```python
import torch

def _softmax(x, axis=-1):
    return torch.softmax(x, dim=axis)
def _gelu(x):
    return torch.nn.functional.gelu(x, approximate="tanh")
def _silu(x):
    return torch.nn.functional.silu(x)
def _sigmoid(x):
    return torch.sigmoid(x)
def _layernorm(x, axis=-1, eps=1e-5):
    m = x.mean(dim=axis, keepdim=True)
    v = x.var(dim=axis, keepdim=True, unbiased=False)
    return (x - m) / torch.sqrt(v + eps)
def _scatter_add(tgt, idx, src, axis=0):
    return tgt.clone().index_add_(axis, idx, src)
def _segment_sum(src, seg, n):
    out = torch.zeros((n,) + src.shape[1:], dtype=src.dtype)
    return out.index_add_(0, seg, src)
def _pad(x, pw):
    flat = tuple(v for pair in reversed(pw) for v in pair)
    return torch.nn.functional.pad(x, flat)

kernel_name = 'standalone__molecular_angular_gemnet__graph'

def setup_inputs():

    _w = (lambda a: (lambda t: t.to(torch.bfloat16) if t.is_floating_point() else t)(torch.as_tensor(a)))
    N, deg, De, L = 10000, 32, 4, 3
    E = N * deg
    T = E * deg
    NR = 8
    dist = torch.rand(E).to(float)
    angle = (torch.rand(T) * torch.pi).to(float)
    centers = torch.linspace(0.0, 1.0, NR).to(float)
    ang_freq = torch.arange(1, L + 1).to(float)
    return {
        "m": _w((lambda *s: torch.randn(*s, dtype=torch.bfloat16) * 0.05)(E, De)),
        "idx_in": _w((lambda lo, hi, *s: torch.randint(lo, hi, s))(0, E, T).to(torch.int64)),
        "idx_out": _w((lambda lo, hi, *s: torch.randint(lo, hi, s))(0, E, T).to(torch.int64)),
        "dist": _w(dist),
        "angle": _w(angle),
        "centers": _w(centers),
        "ang_freq": _w(ang_freq),
        "w_rbf": _w((lambda *s: torch.randn(*s, dtype=torch.bfloat16) * 0.2)(NR, De)),
        "w_sbf": _w((lambda *s: torch.randn(*s, dtype=torch.bfloat16) * 0.2)(NR * L, De)),
        "w_down": _w((lambda *s: torch.randn(*s, dtype=torch.bfloat16) * 0.2)(De, De)),
        "w_up": _w((lambda *s: torch.randn(*s, dtype=torch.bfloat16) * 0.2)(De, De)),
    }

def reference(m, idx_in, idx_out, dist, angle, centers, ang_freq, w_rbf, w_sbf, w_down, w_up):
    E, De = m.shape[0], m.shape[1]
    NR = centers.shape[0]
    L = ang_freq.shape[0]
    rbf = torch.exp(-10.0 * (dist[:, None] - centers[None, :]) ** 2)
    cbf = torch.cos(ang_freq[None, :] * angle[:, None])
    rbf_t = rbf[idx_out]
    sbf = torch.reshape(rbf_t[:, :, None] * cbf[:, None, :], (-1, NR * L))
    x = (m[idx_in] @ w_down) * (sbf @ w_sbf)
    agg = _segment_sum(x, idx_out, E)
    return m + (agg @ w_up) * (rbf @ w_rbf)
```

```python
import re

TRANS = ("v_exp_f32", "v_log_f32", "v_rcp_f32", "v_rsq_f32", "v_sqrt_f32", "v_sin_f32", "v_cos_f32",
         "v_rcp_iflag_f32", "v_rcp_f64", "v_rsq_f64", "v_sqrt_f64")

def regs_of(tok):
    tok = tok.strip()
    tok = tok.lstrip("-").strip("|")
    m = re.fullmatch(r"abs\((.*)\)", tok)
    if m: tok = m.group(1)
    m = re.fullmatch(r"([vs])(\d+)", tok)
    if m: return {(m.group(1), int(m.group(2)))}
    m = re.fullmatch(r"([vs])\[(\d+):(\d+)\]", tok)
    if m: return {(m.group(1), i) for i in range(int(m.group(2)), int(m.group(3)) + 1)}
    if tok == "vcc": return {("s", "vcc")}
    if tok in ("vcc_lo", "vcc_hi"): return {("s", "vcc")}
    if tok in ("exec", "exec_lo", "exec_hi"): return {("s", "exec")}
    if tok == "m0": return {("s", "m0")}
    return set()

class Ins:
    def __init__(self, text):
        self.text = text
        t = text.split(";")[0].strip()
        self.label = t.endswith(":")
        self.directive = t.startswith(".")
        parts = t.split(None, 1)
        self.mn = parts[0] if parts else ""
        rest = parts[1] if len(parts) > 1 else ""
        ops, depth, cur = [], 0, ""
        for ch in rest:
            if ch in "[(": depth += 1
            if ch in "])": depth -= 1
            if ch == "," and depth == 0:
                ops.append(cur.strip()); cur = ""
            else:
                cur += ch
        if cur.strip(): ops.append(cur.strip())
        self.mods = ""
        if ops:
            last = ops[-1].split(None, 1)
            ops[-1] = last[0]
            self.mods = last[1] if len(last) > 1 else ""
        self.ops = ops
        mn = self.mn
        self.valu = mn.startswith("v_")
        self.vmem = mn.startswith(("buffer_", "global_", "flat_"))
        self.ds = mn.startswith("ds_")
        self.salu = mn.startswith("s_")
        self.dpp = "_dpp" in mn
        self.base = re.sub(r"_(e32|e64|dpp|sdwa)$", "", mn)
        self.trans = self.base in TRANS
        self.dot = mn.startswith("v_dot")
        self.wr, self.rd = set(), set()
        if self.valu and ops:
            ndst = 1
            if self.base in ("v_add_co_u32", "v_sub_co_u32", "v_addc_co_u32", "v_subb_co_u32", "v_mad_u64_u32", "v_div_scale_f32"):
                ndst = 2
            for o in ops[:ndst]: self.wr |= regs_of(o)
            for o in ops[ndst:]: self.rd |= regs_of(o)
            if self.base.startswith("v_cmpx"): self.wr.add(("s", "exec"))
            if self.base in ("v_fmac_f32", "v_dot2c_f32_bf16", "v_writelane_b32", "v_pk_fmac_f16") or self.dpp or "UNUSED_PRESERVE" in self.mods:
                self.rd |= regs_of(ops[0])
            if self.base.startswith("v_permlane") or self.base == "v_swap_b32":
                self.wr |= regs_of(ops[1]); self.rd |= regs_of(ops[0])
        elif self.vmem or self.ds:
            for o in ops: self.rd |= regs_of(o)
        elif self.salu and ops:
            self.wr |= regs_of(ops[0])
            for o in ops[1:]: self.rd |= regs_of(o)

    def states(self):
        if self.label or self.directive or not self.mn: return 0
        if self.mn == "s_nop": return int(self.ops[0], 0) + 1
        return 1

def need(prod, cons):
    n = 0
    vw = {r for r in prod.wr if r[0] == "v"}
    sw = {r for r in prod.wr if r[0] == "s"}
    if prod.valu:
        if cons.valu:
            if prod.trans and not cons.trans and (vw & cons.rd): n = max(n, 1)
            if prod.trans and cons.trans and (vw & cons.rd): n = max(n, 1)
            if prod.dot and (vw & (cons.rd | cons.wr)):
                if cons.base == prod.base:
                    ab = set()
                    srcs = cons.ops[1:3]
                    for o in srcs: ab |= regs_of(o)
                    if vw & ab: n = max(n, 3)
                else: n = max(n, 3)
            if cons.dpp and (vw & cons.rd): n = max(n, 2)
            if cons.dpp and ("s", "exec") in sw: n = max(n, 5)
            if cons.base in ("v_readlane_b32", "v_readfirstlane_b32"):
                if vw & regs_of(cons.ops[1]): n = max(n, 1)
                if ("s", "exec") in sw: n = max(n, 4)
            if cons.base in ("v_readlane_b32", "v_writelane_b32") and len(cons.ops) > 2 and (sw & regs_of(cons.ops[2])): n = max(n, 4)
            if cons.base == "v_writelane_b32" and ("s", "exec") in sw: n = max(n, 4)
            rds = set(cons.rd)
            if cons.base in ("v_cndmask_b32", "v_addc_co_u32", "v_subb_co_u32") : pass
            if sw & rds: n = max(n, 2)
            if cons.base.startswith("v_permlane") and (vw & cons.rd): n = max(n, 2)
            if ("sdwa" in prod.mn and "dst_sel:DWORD" not in prod.mods) and (vw & (cons.rd | cons.wr)): n = max(n, 1)
        if cons.vmem and (sw - {("s", "exec")}) & cons.rd: n = max(n, 5)
        if (cons.vmem or cons.ds) and prod.dot and (vw & cons.rd): n = max(n, 3)
        if (cons.vmem or cons.ds) and prod.trans and (vw & cons.rd): n = max(n, 1)
    if prod.vmem and re.search(r"store_dwordx[34]", prod.mn) and cons.valu:
        data = regs_of(prod.ops[0]) if prod.mn.startswith("buffer") else regs_of(prod.ops[1])
        if data & cons.wr: n = max(n, 2)
    if prod.ds and re.search(r"ds_write_b(96|128)", prod.mn) and cons.valu:
        if regs_of(prod.ops[1]) & cons.wr: n = max(n, 2)
    if prod.salu and ("s", "m0") in prod.wr and (cons.vmem and "lds" in (cons.mods + cons.mn)): n = max(n, 1)
    return n

class Asm:
    def __init__(self):
        self.lines = []
        self.uid = 0
    def __call__(self, text):
        for l in text.split("\n"):
            l = l.strip()
            if l: self.lines.append(l)
    def label(self, base):
        self.uid += 1
        return f"L{base}_{self.uid}"
    def padded(self):
        out, hist = [], []
        for l in self.lines:
            ins = Ins(l)
            if l.startswith(";") or ins.label or ins.directive or not ins.mn:
                out.append(l); continue
            dist, req = 0, 0
            for p in reversed(hist[-8:]):
                r = need(p, ins) - dist
                req = max(req, r)
                dist += p.states()
                if dist >= 6: break
            if req > 0:
                nop = Ins(f"s_nop {req-1}")
                out.append(f"    s_nop {req-1}"); hist.append(nop)
            out.append("    " + l); hist.append(ins)
        return "\n".join(out) + "\n"
```

```python
import sys, argparse
from asmlib import Asm

T = 10240000
E = 320000
NAME = "standalone__molecular_angular_gemnet__graph"
HEADER = open("cdna_kernels/%s.s.ref" % NAME).read().split("; Override launch")[0]
WS_BYTES = 268435456
RECOFF = 8 << 20
BIAS = 256

def srd(a, d, lo, hi, nrec, stride=0):
    a(f"s_mov_b32 s{d}, s{lo}")
    if stride:
        a(f"s_and_b32 s{d+1}, s{hi}, 0xffff")
        a(f"s_or_b32 s{d+1}, s{d+1}, {stride << 16}")
    else:
        a(f"s_and_b32 s{d+1}, s{hi}, 0xffff")
    a(f"s_mov_b32 s{d+2}, {nrec}")
    a(f"s_mov_b32 s{d+3}, 0x00020000")

def wave_scan_add(a, v):
    for sh in (1, 2, 4, 8):
        a(f"v_add_u32_dpp v{v}, v{v}, v{v} row_shr:{sh} row_mask:0xf bank_mask:0xf bound_ctrl:0")
    a(f"v_add_u32_dpp v{v}, v{v}, v{v} row_bcast:15 row_mask:0xa bank_mask:0xf")
    a(f"v_add_u32_dpp v{v}, v{v}, v{v} row_bcast:31 row_mask:0xc bank_mask:0xf")

class Cfg:
    def __init__(s, PT=1024, NQ=4, ldnt=True, stmod="nt", recmod=""):
        s.PT, s.NQ = PT, NQ
        s.n = PT * 20
        s.NC = T // s.n
        s.NB = 256 * NQ
        s.CS = (s.n + s.NB) * 6
        assert s.CS % 128 == 0
        s.R0 = s.NB * 4 + 16
        s.PLDS = s.R0 + s.CS
        s.ld = " nt" if ldnt else ""
        s.st = (" " + stmod) if stmod else ""
        s.rec = (" " + recmod) if recmod else ""
        s.JW = 32 if s.NC <= 512 else 64
        s.NT = max(1, NQ * s.JW // 64)

def gen_P(a, c):
    PT, NQ, NB, R0 = c.PT, c.NQ, c.NB, c.R0
    vO = lambda j: 4 + j
    vI = lambda j: 24 + j
    vA = lambda j: 44 + j
    TMP = 54
    a("p_kernel:")
    a(f"s_cmp_ge_u32 s2, {c.NC}")
    a("s_cbranch_scc1 Lp_end")
    a("s_load_dwordx4 s[4:7], s[0:1], 8")
    a("s_load_dwordx2 s[8:9], s[0:1], 32")
    a("s_load_dwordx2 s[10:11], s[0:1], 104")
    a("v_lshlrev_b32 v1, 2, v0")
    a("v_mov_b32 v2, 0")
    for i in range(max(1, NB // PT)):
        a(f"ds_write_b32 v1, v2 offset:{i*PT*4}")
    a("v_lshrrev_b32 v3, 6, v0")
    a("v_and_b32 v2, 63, v0")
    a("v_mul_u32_u24 v1, 5120, v3")
    a("v_lshl_add_u32 v1, v2, 4, v1")
    a("v_lshrrev_b32 v2, 1, v1")
    a("v_readfirstlane_b32 s33, v3")
    a(f"s_mul_i32 s34, s2, {c.n*4}")
    a("s_add_u32 s35, s34, 4096")
    a("s_lshr_b32 s36, s34, 1")
    a("s_waitcnt lgkmcnt(0)")
    srd(a, 12, 4, 5, T * 4)
    srd(a, 16, 6, 7, T * 4)
    srd(a, 20, 8, 9, T * 2)
    srd(a, 28, 10, 11, c.NC * NB * 4)
    for g in range(5):
        so, off = ("s34", g * 1024) if g < 4 else ("s35", 0)
        a(f"buffer_load_dwordx4 v[{vO(4*g)}:{vO(4*g)+3}], v1, s[16:19], {so} offen offset:{off}{c.ld}")
        a(f"buffer_load_dwordx4 v[{vI(4*g)}:{vI(4*g)+3}], v1, s[12:15], {so} offen offset:{off}{c.ld}")
    for g in range(5):
        a(f"buffer_load_dwordx2 v[{vA(2*g)}:{vA(2*g)+1}], v2, s[20:23], s36 offen offset:{g*512}{c.ld}")
    a(f"s_mul_i32 s37, s2, {c.CS}")
    a(f"s_add_u32 s37, s37, {RECOFF}")
    a("s_add_u32 s24, s10, s37")
    a("s_addc_u32 s25, s11, 0")
    a("s_and_b32 s25, s25, 0xffff")
    a("s_mov_b32 s27, 0x00020000")
    a("v_mov_b32 v3, 1")
    a("s_barrier")
    qc = (1 << 32) * NQ // E
    for g in range(5):
        a(f"s_waitcnt vmcnt({13 - 2*g})")
        for j in range(4*g, 4*g + 4):
            o, i, t, u = vO(j), vI(j), TMP + (j & 1) * 2, TMP + 1 + (j & 1) * 2
            a(f"v_lshrrev_b32 v{t}, 8, v{o}")
            if NQ > 1: a(f"v_mul_hi_u32_u24 v{u}, {qc}, v{i}")
            a(f"v_bfi_b32 v{t}, 3, v{o}, v{t}")
            a(f"v_and_b32 v{o}, 0x3fc, v{o}")
            a(f"v_add_u32 v{i}, {BIAS}, v{i}")
            if NQ > 1:
                a(f"v_and_b32 v{u}, {NQ-1}, v{u}")
                a(f"v_lshl_or_b32 v{o}, v{u}, 10, v{o}")
            a(f"v_lshl_or_b32 v{i}, v{t}, 19, v{i}")
            a(f"ds_add_u32 v{o}, v3")
    a("s_waitcnt lgkmcnt(0)")
    a("s_barrier")
    BL = NB // 64
    a("s_cmp_lg_u32 s33, 0")
    a("s_cbranch_scc1 Lp_skipB")
    C = TMP + 2 + 4; C += C & 1
    S = C + BL
    X = S + BL
    a(f"v_lshlrev_b32 v{X}, {(BL*4).bit_length()-1}, v0")
    for i in range(0, BL, 4):
        a(f"ds_read_b128 v[{C+i}:{C+i+3}], v{X} offset:{i*4}")
    a(f"v_mov_b32 v{X+3}, 0")
    a("s_waitcnt lgkmcnt(0)")
    for i in range(BL):
        a(f"v_add_u32 v{C+i}, 1, v{C+i}")
        a(f"v_lshrrev_b32 v{C+i}, 1, v{C+i}")
    a(f"v_mov_b32 v{S}, 0")
    for i in range(1, BL):
        a(f"v_add_u32 v{S+i}, v{S+i-1}, v{C+i-1}")
    a(f"v_add_u32 v{X+2}, v{S+BL-1}, v{C+BL-1}")
    a(f"v_mov_b32 v{X+1}, v{X+2}")
    wave_scan_add(a, X + 1)
    a(f"v_sub_u32 v{X+2}, v{X+1}, v{X+2}")
    a(f"v_mul_u32_u24 v{X+1}, 12, v{X+1}")
    a(f"v_readlane_b32 s38, v{X+1}, 63")
    for i in range(BL):
        a(f"v_add_u32 v{S+i}, v{S+i}, v{X+2}")
    for i in range(BL):
        a(f"v_add_u32 v{X+1}, v{S+i}, v{C+i}")
        a(f"v_mul_u32_u24 v{X+1}, 12, v{X+1}")
        a(f"ds_write_b32 v{X+1}, v{X+3} offset:{R0-4}")
        a(f"v_lshl_or_b32 v{C+i}, v{C+i}, 16, v{S+i}")
        a(f"v_mad_u32_u24 v{S+i}, v{S+i}, 12, 2")
    for i in range(0, BL, 4):
        a(f"ds_write_b128 v{X}, v[{S+i}:{S+i+3}] offset:{i*4}")
    a(f"v_mov_b32 v{X+1}, s38")
    a(f"ds_write_b32 v{X+3}, v{X+1} offset:{NB*4}")
    a(f"s_mul_i32 s39, s2, {NB*4}")
    for i in range(0, BL, 4):
        a(f"buffer_store_dwordx4 v[{C+i}:{C+i+3}], v{X}, s[28:31], s39 offen offset:{i*4}")
    a("s_waitcnt lgkmcnt(0)")
    a("Lp_skipB:")
    a("s_barrier")
    a("v_mov_b32 v3, 6")
    a("v_mov_b32 v2, 0")
    a(f"ds_read_b32 v2, v2 offset:{NB*4}")
    def atom(g):
        for j in range(4*g, 4*g + 4):
            a(f"ds_add_rtn_u32 v{vO(j)}, v{vO(j)}, v3")
    atom(0)
    a("s_waitcnt vmcnt(0)")
    for g in range(5):
        if g < 4: atom(g + 1)
        w = (4 if g < 4 else 0) + (8 if g > 0 else 0)
        a(f"s_waitcnt lgkmcnt({w})")
        for j in range(4*g, 4*g + 4):
            o, t, u = vO(j), TMP + (j & 1) * 2, TMP + 1 + (j & 1) * 2
            a(f"v_and_b32 v{t}, -4, v{o}")
            a(f"v_and_b32 v{u}, 2, v{o}")
            a(f"v_lshl_add_u32 v{u}, v{u}, 1, v{o}")
            a(f"ds_write_b32 v{t}, v{vI(j)} offset:{R0}")
            hi = "_d16_hi" if j & 1 else ""
            a(f"ds_write_b16{hi} v{u}, v{vA(j//2)} offset:{R0-2}")
    a("v_readfirstlane_b32 s26, v2")
    a("v_lshlrev_b32 v1, 4, v0")
    a("v_add_u32 v2, 0x10000, v1")
    a("s_waitcnt lgkmcnt(0)")
    a("s_barrier")
    nit = -(-c.CS // (PT * 16))
    for i in range(nit):
        off = R0 + i * PT * 16
        r, off = ("v1", off) if off < 65536 else ("v2", off - 65536)
        a(f"ds_read_b128 v[{4+4*i}:{7+4*i}], {r} offset:{off}")
    for i in range(nit):
        a(f"s_mov_b32 s40, {i*PT*16}")
        a(f"s_waitcnt lgkmcnt({nit-1-i})")
        a(f"buffer_store_dwordx4 v[{4+4*i}:{7+4*i}], v1, s[24:27], s40 offen{c.st}")
    a("Lp_end:")
    a("s_endpgm")
    return X + 4, 48

SL = 1280
ACC = lambda d: d * SL * 8
GOF = lambda i: (4 + i) * SL * 8

def rbf_pairs(a, vd, dst, t):
    for p in range(4):
        x, y, r = t, t + 1, dst + p
        a(f"v_subrev_f32 v{x}, s{40+2*p}, v{vd}")
        a(f"v_subrev_f32 v{y}, s{41+2*p}, v{vd}")
        for op in ("sq", "m10", "exp"):
            a(f"v_cvt_pk_bf16_f32 v{r}, v{x}, v{y}")
            a(f"v_lshlrev_b32 v{x}, 16, v{r}")
            a(f"v_and_b32 v{y}, 0xffff0000, v{r}")
            if op == "sq":
                a(f"v_mul_f32 v{x}, v{x}, v{x}")
                a(f"v_mul_f32 v{y}, v{y}, v{y}")
            elif op == "m10":
                a(f"v_mul_f32 v{x}, 0xc1200000, v{x}")
                a(f"v_mul_f32 v{y}, 0xc1200000, v{y}")
            else:
                a(f"v_mul_f32 v{x}, 0x3fb8aa3b, v{x}")
                a(f"v_mul_f32 v{y}, 0x3fb8aa3b, v{y}")
                a(f"v_exp_f32 v{x}, v{x}")
                a(f"v_exp_f32 v{y}, v{y}")
        a(f"v_cvt_pk_bf16_f32 v{r}, v{x}, v{y}")

def load_centers(a):
    a("s_load_dwordx2 s[4:5], s[0:1], 40")
    a("s_waitcnt lgkmcnt(0)")
    a("s_load_dwordx4 s[36:39], s[4:5], 0")
    a("s_waitcnt lgkmcnt(0)")
    for p in range(4):
        a(f"s_lshl_b32 s{40+2*p}, s{36+p}, 16")
        a(f"s_and_b32 s{41+2*p}, s{36+p}, 0xffff0000")

def edge_of_slot(a, vslot, vdst, t):
    a(f"v_lshlrev_b32 v{t}, 8, v{vslot}")
    a(f"v_and_b32 v{t}, 0xfffffc00, v{t}")
    a(f"v_and_or_b32 v{vdst}, v{vslot}, 3, v{t}")
    a(f"v_or_b32 v{vdst}, s3, v{vdst}")

def proc_pre(a, vK, vAng, R):
    la, c01, c2l, c2h, g, t = R, R + 1, R + 2, R + 3, R + 4, R + 10
    a(f"v_and_b32_sdwa v{la}, v{vK}, s30 dst_sel:DWORD dst_unused:UNUSED_PAD src0_sel:WORD_1 src1_sel:DWORD")
    a(f"v_mul_f32 v{t}, 0.15915494, v{vAng}")
    a(f"v_mul_f32 v{t+2}, 0x40400000, v{vAng}")
    for i in range(3):
        a(f"ds_read_b64 v[{g+2*i}:{g+2*i+1}], v{la} offset:{GOF(i)}")
    a(f"v_add_f32 v{t+1}, v{t}, v{t}")
    a(f"v_cvt_pk_bf16_f32 v{t+2}, 0, v{t+2}")
    a(f"v_cos_f32 v{t}, v{t}")
    a(f"v_mul_f32 v{t+2}, 0.15915494, v{t+2}")
    a(f"v_cos_f32 v{t+1}, v{t+1}")
    a(f"v_cos_f32 v{t+2}, v{t+2}")
    a(f"v_cvt_pk_bf16_f32 v{c01}, v{t}, v{t+1}")
    a(f"v_cvt_pk_bf16_f32 v{c2l}, v{t+2}, 0")
    a(f"v_cvt_pk_bf16_f32 v{c2h}, 0, v{t+2}")

def proc_post(a, vM, R, X):
    la, c01, c2l, c2h, g, s = R, R + 1, R + 2, R + 3, R + 4, R + 10
    md = X
    for d in range(4):
        a(f"v_dot2_f32_bf16 v{s+d}, v{g+4+d//2}, v{c2h if d & 1 else c2l}, 0")
    for d in range(4):
        a(f"v_dot2_f32_bf16 v{md+d}, v{vM}, s{48+2*d}, 0")
    for d in range(4):
        a(f"v_dot2_f32_bf16 v{s+d}, v{g+d}, v{c01}, v{s+d}")
    for d in range(4):
        a(f"v_dot2_f32_bf16 v{md+d}, v{vM+1}, s{49+2*d}, v{md+d}")
    a(f"v_pk_mul_f32 v[{s}:{s+1}], v[{s}:{s+1}], v[{md}:{md+1}]")
    a(f"v_pk_mul_f32 v[{s+2}:{s+3}], v[{s+2}:{s+3}], v[{md+2}:{md+3}]")
    for d in range(4):
        a(f"v_cvt_f64_f32 v[{X+2*d}:{X+2*d+1}], v{s+d}")
    for d in range(4):
        a(f"ds_add_f64 v{la}, v[{X+2*d}:{X+2*d+1}] offset:{ACC(d)}")

def gen_C(a, c):
    NQ, NB, NT, JW = c.NQ, c.NB, c.NT, c.JW
    vL12, vAD = 1, 2
    vD = lambda i: 4 + 2 * i
    vP = lambda i: 5 + 2 * i
    B = 4 + 2 * NT; B += B & 1
    a("c_kernel:")
    a("s_cmp_ge_u32 s2, 256")
    a("s_cbranch_scc1 Lc_end")
    a("s_and_b32 s3, s2, 7")
    a("s_lshl_b32 s3, s3, 5")
    a("s_lshr_b32 s4, s2, 3")
    a("s_or_b32 s3, s3, s4")
    a("s_lshl_b32 s3, s3, 2")
    a("s_load_dwordx2 s[6:7], s[0:1], 0")
    a("s_load_dwordx2 s[8:9], s[0:1], 24")
    a("s_load_dwordx2 s[10:11], s[0:1], 104")
    a("s_load_dwordx4 s[32:35], s[0:1], 64")
    a("v_lshrrev_b32 v3, 6, v0")
    a("v_readfirstlane_b32 s31, v3")
    a("s_waitcnt lgkmcnt(0)")
    srd(a, 12, 6, 7, E, stride=8)
    srd(a, 16, 8, 9, E * 2)
    srd(a, 20, 10, 11, WS_BYTES)
    srd(a, 24, 10, 11, c.NC * NB * 4)
    a("s_mov_b32 s30, 0xfff8")
    a("v_and_b32 v1, 63, v0")
    for i in range(NT):
        a(f"v_and_b32 v{B}, {JW-1}, v1")
        a(f"v_lshl_add_u32 v{B}, v{B}, 4, v3")
        a(f"v_mul_u32_u24 v{vD(i)}, {c.CS}, v{B}")
        a(f"v_lshlrev_b32 v{B}, {(NB*4).bit_length()-1}, v{B}")
        if JW == 32:
            a(f"v_lshrrev_b32 v{B+1}, 5, v1")
            a(f"v_add_u32 v{B+1}, {2*i}, v{B+1}")
            if NQ == 1:
                a(f"v_lshl_add_u32 v{B}, v{B+1}, 30, v{B}")
            else:
                a(f"v_lshl_add_u32 v{B}, v{B+1}, 10, v{B}")
        else:
            a(f"v_add_u32 v{B}, {i*1024}, v{B}")
        a(f"buffer_load_dword v{vP(i)}, v{B}, s[24:27], s3 offen")
    a(f"v_add_u32 v{B+1}, 1024, v0")
    edge_of_slot(a, 0, B + 2, B + 4)
    edge_of_slot(a, B + 1, B + 3, B + 4)
    a(f"v_lshlrev_b32 v{B+2}, 1, v{B+2}")
    a(f"v_lshlrev_b32 v{B+3}, 1, v{B+3}")
    a(f"buffer_load_ushort v{B+2}, v{B+2}, s[16:19], 0 offen")
    a(f"buffer_load_ushort v{B+3}, v{B+3}, s[16:19], 0 offen")
    load_centers(a)
    a("s_load_dwordx16 s[52:67], s[32:33], 0")
    a("s_load_dwordx16 s[68:83], s[32:33], 64")
    a("s_load_dwordx16 s[84:99], s[32:33], 128")
    a("v_mul_u32_u24 v1, 12, v1")
    a(f"v_lshlrev_b32 v{B+4}, 4, v0")
    for i in range(4): a(f"v_mov_b32 v{B+6+i}, 0")
    a(f"ds_write_b128 v{B+4}, v[{B+6}:{B+9}]")
    a(f"ds_write_b128 v{B+4}, v[{B+6}:{B+9}] offset:16384")
    a(f"v_lshlrev_b32 v{B+4}, 3, v0")
    a(f"ds_write_b64 v{B+4}, v[{B+6}:{B+7}] offset:32768")
    a("s_waitcnt vmcnt(0) lgkmcnt(0)")
    RB, GG, TT = B + 6, B + 10, B + 22
    def g_slot(vdist, ldsoff):
        a(f"v_lshlrev_b32 v{vdist}, 16, v{vdist}")
        rbf_pairs(a, vdist, RB, TT)
        for i in range(4):
            for l in range(3):
                ra, rb = 6 * i + l, 6 * i + 3 + l
                for d in range(4):
                    op = "s_pack_hh_b32_b16" if d & 1 else "s_pack_ll_b32_b16"
                    a(f"{op} s4, s{52 + 2*ra + d//2}, s{52 + 2*rb + d//2}")
                    src = "0" if i == 0 else f"v{GG+4*l+d}"
                    a(f"v_dot2_f32_bf16 v{GG+4*l+d}, v{RB+i}, s4, {src}")
        for d in range(4):
            a(f"v_cvt_pk_bf16_f32 v{GG+d}, v{GG+d}, v{GG+4+d}")
        a(f"v_cvt_pk_bf16_f32 v{GG+4}, v{GG+8}, v{GG+9}")
        a(f"v_cvt_pk_bf16_f32 v{GG+5}, v{GG+10}, v{GG+11}")
        for i in range(3):
            a(f"ds_write_b64 v{B+4}, v[{GG+2*i}:{GG+2*i+1}] offset:{GOF(i)+ldsoff}")
    g_slot(B + 2, 0)
    a("s_cmp_ge_u32 s31, 4")
    a("s_cbranch_scc1 Lc_g2skip")
    a(f"v_add_u32 v{B+4}, 8192, v{B+4}")
    g_slot(B + 3, 0)
    a("Lc_g2skip:")
    a("s_load_dwordx8 s[56:63], s[34:35], 0")
    a("s_waitcnt lgkmcnt(0)")
    for d in range(4):
        op = "s_pack_hh_b32_b16" if d & 1 else "s_pack_ll_b32_b16"
        a(f"{op} s{48+2*d}, s{56 + d//2}, s{58 + d//2}")
        a(f"{op} s{49+2*d}, s{60 + d//2}, s{62 + d//2}")
    a("s_mov_b32 s60, 0")
    for i in range(NT):
        a(f"v_and_b32 v{B}, 0xffff, v{vP(i)}")
        a(f"v_lshrrev_b32 v{B+1}, 16, v{vP(i)}")
        a(f"v_mov_b32 v{vP(i)}, v{B+1}")
        wave_scan_add(a, vP(i))
        a(f"v_add_u32 v{vP(i)}, s60, v{vP(i)}")
        a(f"v_add_u32 v{B}, v{B}, v{B+1}")
        a(f"v_sub_u32 v{B}, v{B}, v{vP(i)}")
        a(f"v_readlane_b32 s60, v{vP(i)}, 63")
        a(f"v_mad_i32_i24 v{vD(i)}, v{B}, 12, v{vD(i)}")
        a(f"v_add_u32 v{vD(i)}, {RECOFF}, v{vD(i)}")
    a("s_mov_b32 s61, 0")
    a("s_mov_b32 s62, 0")
    a("s_mov_b32 s63, -64")
    a("s_mov_b32 s64, 0x40000000")
    a("s_add_u32 s66, s60, 63")
    a("s_lshr_b32 s66, s66, 6")
    a("s_waitcnt lgkmcnt(0)")
    a("s_barrier")
    R0_, R1_ = B, B + 4
    M0, M1, A0, IX = B + 8, B + 10, B + 12, B + 13
    PA, PB, XX = B + 14, B + 28, B + 42
    a("s_cmp_eq_u32 s66, 0")
    a("s_cbranch_scc1 Lc_direct_done")
    a("s_call_b64 s[68:69], Lc_build")
    a(f"buffer_load_dwordx3 v[{R1_}:{R1_+2}], v{vAD}, s[20:23], s65 offen{c.rec}")
    a("Lc_direct:")
    a("s_call_b64 s[68:69], Lc_build")
    a("s_waitcnt vmcnt(0)")
    for i in range(3): a(f"v_mov_b32 v{R0_+i}, v{R1_+i}")
    a(f"v_subrev_u32 v{IX}, {BIAS}, v{R0_}")
    a(f"v_and_b32 v{IX}, 0x7ffff, v{IX}")
    a(f"buffer_load_dwordx2 v[{M0}:{M0+1}], v{IX}, s[12:15], 0 idxen")
    a(f"v_subrev_u32 v{IX}, {BIAS}, v{R0_+2}")
    a(f"v_and_b32 v{IX}, 0x7ffff, v{IX}")
    a(f"buffer_load_dwordx2 v[{M1}:{M1+1}], v{IX}, s[12:15], 0 idxen")
    a(f"buffer_load_dwordx3 v[{R1_}:{R1_+2}], v{vAD}, s[20:23], s65 offen{c.rec}")
    a(f"v_lshlrev_b32 v{A0}, 16, v{R0_+1}")
    a(f"v_and_b32 v{R0_+1}, 0xffff0000, v{R0_+1}")
    proc_pre(a, R0_, A0, PA)
    proc_pre(a, R0_ + 2, R0_ + 1, PB)
    a("s_waitcnt vmcnt(2) lgkmcnt(3)")
    a(f"v_cmpx_ne_u32 vcc, 0, v{R0_}")
    proc_post(a, M0, PA, XX)
    a("s_mov_b64 exec, -1")
    a("s_waitcnt vmcnt(1) lgkmcnt(4)")
    a(f"v_cmpx_ne_u32 vcc, 0, v{R0_+2}")
    proc_post(a, M1, PB, XX + 8)
    a("s_mov_b64 exec, -1")
    a("s_sub_u32 s66, s66, 1")
    a("s_cmp_lg_u32 s66, 0")
    a("s_cbranch_scc1 Lc_direct")
    a("Lc_direct_done:")
    a("s_waitcnt vmcnt(0) lgkmcnt(0)")
    a("s_barrier")
    a("s_load_dwordx2 s[32:33], s[0:1], 56")
    a("s_load_dwordx4 s[4:7], s[0:1], 80")
    a("s_waitcnt lgkmcnt(0)")
    a("s_load_dwordx16 s[52:67], s[32:33], 0")
    a("s_load_dwordx8 s[68:75], s[4:5], 0")
    srd(a, 20, 6, 7, E * 8)
    EB = 4
    def fin_slot(vslot):
        ve, vdist, vm, la = EB, EB + 1, EB + 2, EB + 4
        AC, RB, GT, UP, TT = EB + 6, EB + 14, EB + 18, EB + 22, EB + 26
        edge_of_slot(a, vslot, ve, TT)
        a(f"v_lshlrev_b32 v{vdist}, 1, v{ve}")
        a(f"buffer_load_ushort v{vdist}, v{vdist}, s[16:19], 0 offen")
        a(f"buffer_load_dwordx2 v[{vm}:{vm+1}], v{ve}, s[12:15], 0 idxen")
        a(f"v_lshlrev_b32 v{la}, 3, v{vslot}")
        for d in range(4):
            a(f"ds_read_b64 v[{AC+2*d}:{AC+2*d+1}], v{la} offset:{ACC(d)}")
        a("s_waitcnt vmcnt(1) lgkmcnt(0)")
        a(f"v_lshlrev_b32 v{vdist}, 16, v{vdist}")
        rbf_pairs(a, vdist, RB, TT)
        for i in range(4):
            for d in range(4):
                op = "s_pack_hh_b32_b16" if d & 1 else "s_pack_ll_b32_b16"
                a(f"{op} s8, s{52 + 4*i + d//2}, s{52 + 4*i + 2 + d//2}")
                src = "0" if i == 0 else f"v{GT+d}"
                a(f"v_dot2_f32_bf16 v{GT+d}, v{RB+i}, s8, {src}")
        for d in range(4):
            a(f"v_cvt_f32_f64 v{AC+d}, v[{AC+2*d}:{AC+2*d+1}]")
        a(f"v_cvt_pk_bf16_f32 v{AC}, v{AC}, v{AC+1}")
        a(f"v_cvt_pk_bf16_f32 v{AC+1}, v{AC+2}, v{AC+3}")
        for i in range(2):
            for d in range(4):
                op = "s_pack_hh_b32_b16" if d & 1 else "s_pack_ll_b32_b16"
                a(f"{op} s8, s{68 + 4*i + d//2}, s{68 + 4*i + 2 + d//2}")
                src = "0" if i == 0 else f"v{UP+d}"
                a(f"v_dot2_f32_bf16 v{UP+d}, v{AC+i}, s8, {src}")
        for d in range(4):
            a(f"v_cvt_pk_bf16_f32 v{GT+d}, 0, v{GT+d}")
        for d in range(4):
            a(f"v_cvt_pk_bf16_f32 v{UP+d}, 0, v{UP+d}")
        for d in range(4):
            a(f"v_mul_f32 v{UP+d}, v{UP+d}, v{GT+d}")
        for d in range(4):
            a(f"v_cvt_pk_bf16_f32 v{UP+d}, 0, v{UP+d}")
        a("s_waitcnt vmcnt(0)")
        for d in range(4):
            if d & 1: a(f"v_and_b32 v{GT+d}, 0xffff0000, v{vm+d//2}")
            else: a(f"v_lshlrev_b32 v{GT+d}, 16, v{vm+d//2}")
        for d in range(4):
            a(f"v_add_f32 v{UP+d}, v{UP+d}, v{GT+d}")
        a(f"v_cvt_pk_bf16_f32 v{vm}, v{UP}, v{UP+1}")
        a(f"v_cvt_pk_bf16_f32 v{vm+1}, v{UP+2}, v{UP+3}")
        a(f"v_lshlrev_b32 v{ve}, 3, v{ve}")
        a(f"buffer_store_dwordx2 v[{vm}:{vm+1}], v{ve}, s[20:23], 0 offen")
    fin_slot(0)
    a("s_cmp_ge_u32 s31, 4")
    a("s_cbranch_scc1 Lc_end")
    a("v_add_u32 v0, 1024, v0")
    a("s_waitcnt vmcnt(0)")
    fin_slot(0)
    a("Lc_end:")
    a("s_endpgm")
    a("Lc_build:")
    a("s_add_u32 s63, s63, 64")
    a("s_mul_i32 s65, s63, 12")
    a(f"v_add_u32 v{vAD}, s64, v{vL12}")
    a("Lc_run:")
    a("s_sub_u32 s67, s62, s63")
    a("s_cmp_ge_u32 s67, 64")
    a("s_cbranch_scc1 Lc_built")
    a("s_cmp_eq_u32 s61, 64")
    a("s_cbranch_scc1 Lc_switch")
    a("Lc_cont:")
    a(f"v_readlane_b32 s64, v{vD(0)}, s61")
    a(f"v_readlane_b32 s62, v{vP(0)}, s61")
    a("s_lshl_b64 exec, -1, s67")
    a("s_add_u32 s61, s61, 1")
    a(f"v_add_u32 v{vAD}, s64, v{vL12}")
    a("s_branch Lc_run")
    a("Lc_built:")
    a("s_mov_b64 exec, -1")
    a("s_setpc_b64 s[68:69]")
    a("Lc_switch:")
    a("s_mov_b64 exec, -1")
    for i in range(NT - 1):
        a(f"v_mov_b32 v{vD(i)}, v{vD(i+1)}")
        a(f"v_mov_b32 v{vP(i)}, v{vP(i+1)}")
    a(f"v_mov_b32 v{vD(NT-1)}, 0x40000000")
    a(f"v_mov_b32 v{vP(NT-1)}, 0x7fffffff")
    a("s_mov_b32 s61, 0")
    a("s_nop 1")
    a("s_branch Lc_cont")
    return XX + 16, 102

def desc(name, vgpr, sgpr):
    v4 = -(-vgpr // 4) * 4
    return f""".amdhsa_kernel {name}
  .amdhsa_next_free_vgpr {vgpr}
  .amdhsa_next_free_sgpr {sgpr}
  .amdhsa_accum_offset {v4}
  .amdhsa_group_segment_fixed_size 0
  .amdhsa_kernarg_size 112
  .amdhsa_user_sgpr_count 2
  .amdhsa_user_sgpr_kernarg_segment_ptr 1
  .amdhsa_system_sgpr_workgroup_id_x 1
  .amdhsa_float_denorm_mode_32 3
.end_amdhsa_kernel
"""

def build(c):
    ap, ac = Asm(), Asm()
    pv, ps = gen_P(ap, c)
    cv, cs = gen_C(ac, c)
    clds = 7 * SL * 8
    out = HEADER
    out += f"; @launch kernel=p_kernel grid=({c.NC},1,1) block=({c.PT},1,1) lds={c.PLDS}\n"
    out += f"; @launch kernel=c_kernel grid=(256,1,1) block=(1024,1,1) lds={clds}\n"
    out += '.amdgcn_target "amdgcn-amd-amdhsa--gfx950"\n.text\n'
    for name, body in (("p_kernel", ap), ("c_kernel", ac)):
        out += f".globl {name}\n.p2align 8\n.type {name},@function\n" + body.padded()
    out += '.section .rodata,"a"\n.p2align 6\n' + desc("p_kernel", pv, ps) + ".p2align 6\n" + desc("c_kernel", cv, cs)
    return out

if __name__ == "__main__":
    ap = argparse.ArgumentParser()
    ap.add_argument("-o", default=f"cdna_kernels/{NAME}.s")
    ap.add_argument("--PT", type=int, default=1024)
    ap.add_argument("--NQ", type=int, default=4)
    ap.add_argument("--ld", default="nt")
    ap.add_argument("--st", default="nt")
    ap.add_argument("--rec", default="")
    x = ap.parse_args()
    c = Cfg(PT=x.PT, NQ=x.NQ, ldnt=(x.ld == "nt"), stmod=x.st, recmod=x.rec)
    open(x.o, "w").write(build(c))
```

```python
import sys, argparse, struct
from asmlib import Asm

T = 10240000
E = 320000
NAME = "standalone__molecular_angular_gemnet__graph"
HEADER = open("cdna_kernels/%s.s.ref" % NAME).read().split("; Override launch")[0]
WS_BYTES = 268435456
EXP = set()
MDOFF = 3 << 20
MAXOFF = 7 << 20
WOFF = MAXOFF + 4096
RECOFF = 8 << 20
BIAS = 64
MARK = 0x40000000
MAGIC = 0x4B400000
STAMP_OFF = 0xC000000

def f32(x): return "0x%08x" % struct.unpack("<I", struct.pack("<f", x))[0]

def srd(a, d, lo, hi, nrec, stride=0, off=0):
    if off:
        a(f"s_add_u32 s{d}, s{lo}, {off}")
        a(f"s_addc_u32 s{d+1}, s{hi}, 0")
        a(f"s_and_b32 s{d+1}, s{d+1}, 0xffff")
    else:
        a(f"s_mov_b32 s{d}, s{lo}")
        a(f"s_and_b32 s{d+1}, s{hi}, 0xffff")
    if stride: a(f"s_or_b32 s{d+1}, s{d+1}, {stride << 16}")
    a(f"s_mov_b32 s{d+2}, {nrec}")
    a(f"s_mov_b32 s{d+3}, 0x00020000")

def wave_scan(a, regs, op="v_add_u32"):
    if isinstance(regs, int): regs = [regs]
    for sh in (1, 2, 4, 8):
        for v in regs: a(f"{op}_dpp v{v}, v{v}, v{v} row_shr:{sh} row_mask:0xf bank_mask:0xf bound_ctrl:0")
    for v in regs: a(f"{op}_dpp v{v}, v{v}, v{v} row_bcast:15 row_mask:0xa bank_mask:0xf")
    for v in regs: a(f"{op}_dpp v{v}, v{v}, v{v} row_bcast:31 row_mask:0xc bank_mask:0xf")

def stamp(a, v=127):
    if "stamp" not in EXP: return
    a("s_memtime s[100:101]")
    a("s_waitcnt lgkmcnt(0)")
    a(f"v_writelane_b32 v{v}, s100, m0")
    a("s_add_u32 m0, m0, 1")

def rstamp(a, lane, v=127, flag="stamp"):
    if flag not in EXP: return
    a("s_memrealtime s[100:101]")
    a("s_waitcnt lgkmcnt(0)")
    a(f"v_writelane_b32 v{v}, s100, {lane}")

def pack_hi_aware(a, dst, lo, hi, t):
    a(f"v_cvt_pk_bf16_f32 v{t}, v{lo}, 0")
    a(f"v_and_b32 v{t+1}, 0x7fffffff, v{hi}")
    a(f"v_add_u32 v{t+1}, 0x8000, v{t+1}")
    a(f"v_sub_u32 v{t+1}, v{t+1}, v{t}")
    a(f"v_max_i32 v{t+1}, 0, v{t+1}")
    a(f"v_and_b32 v{t+1}, 0x7fff0000, v{t+1}")
    a(f"v_or_b32 v{t}, v{t}, v{t+1}")
    a(f"v_and_b32 v{t+1}, 0x80000000, v{hi}")
    a(f"v_or_b32 v{dst}, v{t}, v{t+1}")

class Cfg:
    def __init__(s, ld="", st="", rec=""):
        s.NQ = 4
        s.n = 20000
        s.NC = T // s.n
        s.NB = 256 * s.NQ
        s.CS = -(-(s.n + s.NB) * 6 // 128) * 128
        s.ld = (" " + ld) if ld else ""
        s.st = (" " + st) if st else ""
        s.rec = (" " + rec) if rec else ""
        s.NMAX = 256
        s.PT = 1024

QC = (1 << 32) * 4 // E
QGAP = 131072 - E // 4

class VM:
    def __init__(s, a): s.a, s.q = a, []
    def issue(s, tag, text): s.a(text); s.q.append(tag)
    def wait(s, *tags):
        k = max(len(s.q) - 1 - s.q[::-1].index(t) for t in tags)
        s.a(f"s_waitcnt vmcnt({len(s.q) - 1 - k})")

class Sched:
    def __init__(s, a): s.a, s.v, s.l, s.vd, s.ld = a, [], [], 0, 0
    def vm(s, tag): s.v.append(tag)
    def ds(s, tag, n=1): s.l += [tag] * n
    def _cnt(s, q, done, tags, cap):
        ks = [len(q) - 1 - q[::-1].index(t) for t in tags if t in q]
        if not ks or max(ks) < done: return None, done
        n = min(len(q) - 1 - max(ks), cap)
        return n, len(q) - n
    def need(s, v=(), l=()):
        nv, s.vd = s._cnt(s.v, s.vd, v, 63)
        nl, s.ld = s._cnt(s.l, s.ld, l, 15)
        parts = ([f"vmcnt({nv})"] if nv is not None else []) + ([f"lgkmcnt({nl})"] if nl is not None else [])
        if parts: s.a("s_waitcnt " + " ".join(parts))
    def drain_l(s): s.a("s_waitcnt lgkmcnt(0)"); s.ld = len(s.l)
    def copy(s, a):
        t = Sched(a); t.v, t.l, t.vd, t.ld = list(s.v), list(s.l), s.vd, s.ld; return t

def gen_P(a, c):
    NB = c.NB
    HS = lambda s: s * NB * 4
    MISC = 2 * NB * 4
    R0 = MISC + 32
    TSTG = R0 + (c.n + NB) * 6
    c.PLDS = TSTG + 8192
    c.PGRID = 256
    vO = lambda s, j: 4 + 50 * s + j
    vI = lambda s, j: 24 + 50 * s + j
    vA = lambda s, j: 44 + 50 * s + j
    S, X, TMP = 104, 120, 124
    vm = VM(a)
    a("p_kernel:")
    a("s_cmp_ge_u32 s2, 256")
    a("s_cbranch_scc1 Lp_end")
    if "pstamp" in EXP:
        a("s_mov_b32 m0, 0")
    a("s_load_dwordx4 s[4:7], s[0:1], 8")
    a("s_load_dwordx2 s[8:9], s[0:1], 32")
    a("s_load_dwordx2 s[10:11], s[0:1], 104")
    a("s_load_dwordx2 s[44:45], s[0:1], 0")
    a("s_load_dwordx2 s[46:47], s[0:1], 72")
    a("v_lshlrev_b32 v1, 4, v0")
    a("v_lshlrev_b32 v2, 3, v0")
    a(f"v_mov_b32 v{S}, 0")
    a(f"v_mov_b32 v{S+1}, 0")
    a(f"ds_write_b64 v2, v[{S}:{S+1}]")
    a(f"ds_write_b64 v2, v[{S}:{S+1}] offset:{MISC}")
    a("v_lshrrev_b32 v3, 6, v0")
    a("v_readfirstlane_b32 s33, v3")
    a("v_cmpx_gt_u32 vcc, 1000, v0")
    a("s_mul_i32 s34, s2, 160000")
    a("s_lshr_b32 s36, s34, 1")
    a("s_waitcnt lgkmcnt(0)")
    srd(a, 16, 6, 7, T * 4)
    srd(a, 12, 4, 5, T * 4)
    def ld(kind, s, g):
        if kind == "A":
            a(f"s_add_u32 s35, s36, {(5*s+g)*8000}")
            vm.issue(("A", s, g), f"buffer_load_dwordx2 v[{vA(s,2*g)}:{vA(s,2*g)+1}], v2, s[20:23], s35 offen{c.ld}")
        else:
            r, sr = (vO(s, 4*g), 16) if kind == "O" else (vI(s, 4*g), 12)
            a(f"s_add_u32 s35, s34, {(5*s+g)*16000}")
            vm.issue((kind, s, g), f"buffer_load_dwordx4 v[{r}:{r+3}], v1, s[{sr}:{sr+3}], s35 offen{c.ld}")
    ld("O", 0, 0); ld("I", 0, 0)
    a("s_load_dwordx8 s[56:63], s[46:47], 0")
    srd(a, 48, 44, 45, E * 8)
    M = S
    a("s_mul_i32 s41, s2, 10000")
    a("s_add_u32 s42, s41, 8000")
    vm.issue("m0", f"buffer_load_dwordx2 v[{M}:{M+1}], v2, s[48:51], s41 offen")
    vm.issue("m1", f"buffer_load_dwordx2 v[{M+2}:{M+3}], v2, s[48:51], s42 offen")
    for g in range(1, 5): ld("O", 0, g); ld("I", 0, g)
    srd(a, 20, 8, 9, T * 2)
    srd(a, 28, 10, 11, RECOFF)
    for s in range(2):
        d = (24, 52)[s]
        a(f"s_mul_i32 s37, s2, {2*c.CS}")
        a(f"s_add_u32 s37, s37, {RECOFF + s*c.CS}")
        a(f"s_add_u32 s{d}, s10, s37")
        a(f"s_addc_u32 s{d+1}, s11, 0")
        a(f"s_and_b32 s{d+1}, s{d+1}, 0xffff")
        a(f"s_mov_b32 s{d+3}, 0x00020000")
    a(f"s_mov_b32 s43, {QGAP}")
    a("s_waitcnt lgkmcnt(0)")
    a("s_barrier")
    a("s_lshl_b32 s40, s2, 4")
    a("s_or_b32 s40, s40, s33")
    a("s_cmp_lg_u32 s40, 14")
    a("s_cbranch_scc1 Lp_now")
    a("s_load_dwordx4 s[64:67], s[0:1], 56")
    a("s_load_dwordx2 s[68:69], s[0:1], 80")
    a("s_load_dwordx2 s[70:71], s[0:1], 40")
    W = vO(1, 0)
    a(f"v_and_b32 v{W}, 63, v0")
    a(f"v_mul_u32_u24 v{W+1}, 43, v{W}")
    a(f"v_lshrrev_b32 v{W+1}, 9, v{W+1}")
    a(f"v_mul_u32_u24 v{W+1}, 24, v{W+1}")
    a(f"v_lshl_add_u32 v{W+1}, v{W}, 1, v{W+1}")
    a(f"v_and_b32 v{W+2}, -4, v{W}")
    a(f"v_add_u32 v{W+2}, v{W+2}, v{W}")
    a(f"v_lshlrev_b32 v{W+2}, 1, v{W+2}")
    a(f"v_lshlrev_b32 v{W+3}, 1, v{W}")
    a(f"v_lshlrev_b32 v{W}, 2, v{W}")
    a("s_waitcnt lgkmcnt(0)")
    srd(a, 72, 66, 67, 192)
    srd(a, 76, 64, 65, 64)
    srd(a, 80, 68, 69, 32)
    srd(a, 84, 70, 71, 16)
    a(f"buffer_load_ushort v{W+4}, v{W+1}, s[72:75], 0 offen")
    a(f"buffer_load_ushort v{W+5}, v{W+1}, s[72:75], 0 offen offset:24")
    a(f"buffer_load_ushort v{W+6}, v{W+2}, s[76:79], 0 offen")
    a(f"buffer_load_ushort v{W+7}, v{W+2}, s[76:79], 0 offen offset:8")
    a(f"buffer_load_ushort v{W+8}, v{W+2}, s[80:83], 0 offen")
    a(f"buffer_load_ushort v{W+9}, v{W+2}, s[80:83], 0 offen offset:8")
    a(f"buffer_load_ushort v{W+10}, v{W+3}, s[84:87], 0 offen")
    a("s_waitcnt vmcnt(0)")
    for k in range(3): a(f"v_lshl_or_b32 v{W+4+2*k}, v{W+5+2*k}, 16, v{W+4+2*k}")
    a(f"v_lshlrev_b32 v{W+10}, 16, v{W+10}")
    a(f"s_mov_b32 s40, {WOFF}")
    for k in range(4): a(f"buffer_store_dword v{W+4+2*k}, v{W}, s[28:31], s40 offen offset:{256*k}")
    a("Lp_now:")
    def md_row(h):
        r = M + 2 * h
        for k in range(2):
            for d in range(4):
                op = "s_pack_hh_b32_b16" if d & 1 else "s_pack_ll_b32_b16"
                a(f"{op} s40, s{56 + 4*k + d//2}, s{58 + 4*k + d//2}")
                a(f"v_dot2_f32_bf16 v{M+4+d}, v{r+k}, s40, {'0' if k == 0 else 'v%d' % (M+4+d)}")
        a(f"s_mul_i32 s40, s2, 1250")
        a(f"s_add_u32 s40, s40, {1000*h}")
        a(f"v_add_u32 v{M+10}, s40, v0")
        a(f"v_max3_f32 v{M+11}, |v{M+4}|, |v{M+5}|, |v{M+6}|")
        a(f"v_max_f32 v{M+11}, v{M+11}, |v{M+7}|")
        a(f"v_mov_b32 v{M+12}, {MISC+8}")
        a(f"ds_max_u32 v{M+12}, v{M+11}")
        pack_hi_aware(a, r, M + 4, M + 5, M + 8)
        pack_hi_aware(a, r + 1, M + 6, M + 7, M + 8)
        a(f"v_mul_hi_u32_u24 v{M+8}, {QC}, v{M+10}")
        a(f"v_mad_u32_u24 v{M+10}, v{M+8}, s43, v{M+10}")
        a(f"v_lshlrev_b32 v{M+10}, 3, v{M+10}")
        a(f"s_mov_b32 s40, {MDOFF + BIAS*8}")
        a(f"buffer_store_dwordx2 v[{r}:{r+1}], v{M+10}, s[28:31], s40 offen")
    vm.wait("m1")
    md_row(0)
    a("s_cmp_ge_u32 s33, 4")
    a("s_cbranch_scc1 Lp_nomd")
    a("v_cmpx_gt_u32 vcc, 250, v0")
    md_row(1)
    a("s_mov_b64 exec, -1")
    a("Lp_nomd:")

    def hist(s, g):
        vm.wait(("O", s, g), ("I", s, g))
        a("v_mov_b32 v3, 1")
        for j in range(4*g, 4*g + 4):
            o, i, t, u = vO(s, j), vI(s, j), TMP + (j & 1) * 2, TMP + 1 + (j & 1) * 2
            a(f"v_lshrrev_b32 v{t}, 8, v{o}")
            a(f"v_mul_hi_u32_u24 v{u}, {QC}, v{i}")
            a(f"v_add_u32 v{i}, {BIAS}, v{i}")
            a(f"v_bfi_b32 v{t}, 3, v{o}, v{t}")
            a(f"v_and_b32 v{u}, 3, v{u}")
            a(f"v_and_b32 v{o}, 0x3fc, v{o}")
            a(f"v_mad_u32_u24 v{i}, v{u}, s43, v{i}")
            a(f"v_lshl_or_b32 v{o}, v{u}, 10, v{o}")
            a(f"v_lshl_or_b32 v{i}, v{t}, 19, v{i}")
            a(f"ds_add_u32 v{o}, v3 offset:{HS(s)}")
    BL = NB // 64
    def prefix(s, C):
        a(f"v_lshlrev_b32 v{X}, 6, v0")
        for i in range(0, BL, 4):
            a(f"ds_read_b128 v[{C+i}:{C+i+3}], v{X} offset:{HS(s)+i*4}")
        a(f"v_mov_b32 v{X+3}, 0")
        if s == 0: a(f"ds_read_b32 v{TMP}, v{X+3} offset:{MISC+8}")
        a("s_waitcnt lgkmcnt(0)")
        for i in range(BL):
            a(f"v_add_u32 v{C+i}, 1, v{C+i}")
            a(f"v_lshrrev_b32 v{C+i}, 1, v{C+i}")
        a(f"v_mov_b32 v{S}, v{C}")
        for i in range(1, BL):
            a(f"v_add_u32 v{S+i}, v{S+i-1}, v{C+i}")
        a(f"v_mov_b32 v{X+1}, v{S+BL-1}")
        wave_scan(a, X + 1)
        a(f"v_sub_u32 v{X+2}, v{X+1}, v{S+BL-1}")
        a(f"v_mul_u32_u24 v{X+1}, 12, v{X+1}")
        a(f"v_readlane_b32 s38, v{X+1}, 63")
        for i in range(BL):
            a(f"v_add_u32 v{S+i}, v{S+i}, v{X+2}")
            a(f"v_mul_u32_u24 v{X+1}, 12, v{S+i}")
            a(f"v_sub_u32 v{S+i}, v{S+i}, v{C+i}")
            a(f"ds_write_b32 v{X+1}, v{X+3} offset:{R0-4}")
            a(f"v_lshl_or_b32 v{C+i}, v{C+i}, 16, v{S+i}")
            a(f"v_mad_u32_u24 v{S+i}, v{S+i}, 12, 2")
        for i in range(0, BL, 4):
            a(f"ds_write_b128 v{X}, v[{S+i}:{S+i+3}] offset:{HS(s)+i*4}")
        a(f"v_mov_b32 v{X+1}, s38")
        a(f"ds_write_b32 v{X+3}, v{X+1} offset:{MISC+4*s}")
        a("s_waitcnt lgkmcnt(0)")
        a("s_barrier")
        a(f"v_and_b32 v{X}, 15, v0")
        a(f"v_lshlrev_b32 v{X}, 9, v{X}")
        a(f"v_lshrrev_b32 v{X+1}, 1, v0")
        a(f"v_and_or_b32 v{X}, v{X+1}, 8, v{X}")
        a(f"v_lshrrev_b32 v{X+1}, 3, v0")
        a(f"v_and_or_b32 v{X}, v{X+1}, 4, v{X}")
        a(f"v_add_u32 v{X}, {TSTG}, v{X}")
        for i in range(BL):
            a(f"ds_write_b32 v{X}, v{C+i} offset:{i*32+s*16}")
        if s == 0:
            a("s_lshl_b32 s39, s2, 2")
            a(f"s_add_u32 s39, s39, {MAXOFF}")
            a(f"buffer_store_dword v{TMP}, v{X+3}, s[28:31], s39 offen")
    def cosines(s, lo, hi):
        for p in range(lo, hi):
            t, u, r = TMP + (p & 1) * 2, TMP + 1 + (p & 1) * 2, vA(s, p)
            a(f"v_lshlrev_b32 v{t}, 16, v{r}")
            a(f"v_and_b32 v{u}, 0xffff0000, v{r}")
            for x in (t, u): a(f"v_mul_f32 v{x}, 0.15915494, v{x}")
            for x in (t, u): a(f"v_fract_f32 v{x}, v{x}")
            for x in (t, u): a(f"v_cos_f32 v{x}, v{x}")
            a(f"v_cvt_pknorm_i16_f32 v{r}, v{t}, v{u}")
    def phaseB(s, C, fill):
        a("s_waitcnt lgkmcnt(0)")
        a("s_barrier")
        a("s_cmp_lg_u32 s33, 0")
        a(f"s_cbranch_scc1 Lp_skipB{s}")
        a("s_setprio 3")
        prefix(s, C)
        a(f"Lp_skipB{s}:")
        vm.wait(("A", s, 4))
        cosines(s, 0, 5)
        for f in fill: f()
        cosines(s, 5, 10)
        a("s_cmp_eq_u32 s33, 0")
        a(f"s_cbranch_scc1 Lp_skipBB{s}")
        a("s_barrier")
        a(f"Lp_skipBB{s}:")
    def phaseC(s, fill):
        a("v_mov_b32 v3, 6")
        a(f"v_mov_b32 v{X}, 0")
        a(f"ds_read_b32 v{X}, v{X} offset:{MISC+4*s}")
        def atom(g):
            for j in range(4*g, 4*g + 4):
                a(f"ds_add_rtn_u32 v{vO(s,j)}, v{vO(s,j)}, v3 offset:{HS(s)}")
        atom(0)
        for g in range(5):
            if g < 4: atom(g + 1)
            w = (4 if g < 4 else 0) + (8 if g > 0 else 0)
            for f in fill[g]: f()
            a(f"s_waitcnt lgkmcnt({w})")
            for j in range(4*g, 4*g + 4):
                o, t, u = vO(s, j), TMP + (j & 1) * 2, TMP + 1 + (j & 1) * 2
                a(f"v_and_b32 v{t}, -4, v{o}")
                a(f"v_and_b32 v{u}, 2, v{o}")
                a(f"v_lshl_add_u32 v{u}, v{u}, 1, v{o}")
                a(f"ds_write_b32 v{t}, v{vI(s,j)} offset:{R0}")
                hi = "_d16_hi" if j & 1 else ""
                a(f"ds_write_b16{hi} v{u}, v{vA(s,j//2)} offset:{R0-2}")
        a(f"v_readfirstlane_b32 s{(26, 54)[s]}, v{X}")
        a(f"v_add_u32 v{X}, 0x10000, v1")
        a("s_waitcnt lgkmcnt(0)")
        a("s_barrier")
        a("s_setprio 0")
        for i in range(8):
            off = R0 + i * 16000
            r, off = ("v1", off) if off < 65536 else (f"v{X}", off - 65536)
            a(f"ds_read_b128 v[{vO(s,4*i)}:{vO(s,4*i)+3}], {r} offset:{off}")
    def st(s, i):
        d = (24, 52)[s]
        a(f"s_mov_b32 s40, {i*16000}")
        vm.issue(("S", s, i), f"buffer_store_dwordx4 v[{vO(s,4*i)}:{vO(s,4*i)+3}], v1, s[{d}:{d+3}], s40 offen{c.st}")
    L = lambda k, s, g: (lambda: ld(k, s, g))
    ST = lambda s, i: (lambda: st(s, i))

    for g in range(5):
        ld("A", 0, g)
        hist(0, g)
    ld("O", 1, 0); ld("I", 1, 0)
    phaseB(0, vI(1, 4), [L("O", 1, 1)])
    phaseC(0, [[L("I", 1, 1)], [L("O", 1, 2)], [L("I", 1, 2)], [L("O", 1, 3)], [L("I", 1, 3)]])
    ld("O", 1, 4); hist(1, 0)
    ld("I", 1, 4); hist(1, 1)
    ld("A", 1, 0); ld("A", 1, 1); hist(1, 2)
    ld("A", 1, 2); ld("A", 1, 3); hist(1, 3)
    ld("A", 1, 4)
    a("s_waitcnt lgkmcnt(15)")
    st(0, 0)
    hist(1, 4)
    st(0, 1)
    phaseB(1, vO(0, 32), [ST(0, 2)])
    phaseC(1, [[ST(0, 3)], [ST(0, 4)], [ST(0, 5)], [ST(0, 6)], [ST(0, 7)]])
    a(f"v_add_u32 v{X+1}, {TSTG}, v1")
    a(f"ds_read_b128 v[{S}:{S+3}], v{X+1}")
    for i in range(8):
        a(f"s_waitcnt lgkmcnt({8-i})")
        st(1, i)
    a("s_cmp_ge_u32 s33, 8")
    a("s_cbranch_scc1 Lp_end")
    a("s_lshl_b32 s39, s2, 13")
    a("s_waitcnt lgkmcnt(0)")
    a(f"buffer_store_dwordx4 v[{S}:{S+3}], v1, s[28:31], s39 offen")
    a("Lp_end:")
    a("s_endpgm")
    return 128, 96

SL = 1280
HIST, BASE = 0, 5120
GA, GB = 10240, 10240 + 16 * SL
AC01, AC23 = GB + 8 * SL, GB + 16 * SL
GATE = GB + 24 * SL
BUF = GATE + 8 * SL
NW, NBATCH = 5, 4
NWIN = NW * NBATCH + 2
SCRW = NWIN * 256
CLDS = BUF + 16 * SCRW
assert CLDS <= 163840
FLAG = HIST + 4 * 1270
KAP = 1.0 / 32767.0
AINIT = 0x40000000

def rbf_pairs(a, vd, dst, t, sc):
    for p in range(4):
        x, y, r = t, t + 1, dst + p
        a(f"v_subrev_f32 v{x}, s{sc+2*p}, v{vd}")
        a(f"v_subrev_f32 v{y}, s{sc+1+2*p}, v{vd}")
        for op in ("sq", "m10", "exp"):
            a(f"v_cvt_pk_bf16_f32 v{x}, 0, v{x}")
            a(f"v_cvt_pk_bf16_f32 v{y}, 0, v{y}")
            if op == "sq":
                a(f"v_mul_f32 v{x}, v{x}, v{x}")
                a(f"v_mul_f32 v{y}, v{y}, v{y}")
            elif op == "m10":
                a(f"v_mul_f32 v{x}, 0xc1200000, v{x}")
                a(f"v_mul_f32 v{y}, 0xc1200000, v{y}")
            else:
                a(f"v_mul_f32 v{x}, 0x3fb8aa3b, v{x}")
                a(f"v_mul_f32 v{y}, 0x3fb8aa3b, v{y}")
                a(f"v_exp_f32 v{x}, v{x}")
                a(f"v_exp_f32 v{y}, v{y}")
        a(f"v_cvt_pk_bf16_f32 v{r}, v{x}, v{y}")

def edge_of_slot(a, vslot, vdst, t):
    a(f"v_lshlrev_b32 v{t}, 8, v{vslot}")
    a(f"v_and_b32 v{t}, 0xfffffc00, v{t}")
    a(f"v_and_or_b32 v{vdst}, v{vslot}, 3, v{t}")
    a(f"v_or_b32 v{vdst}, s3, v{vdst}")

def gen_C(a, c):
    NB = c.NB
    L0 = "l1" not in EXP
    vLane, vSA, vEight, vSticky, vTot, vNegM = 1, 2, 3, 4, 5, 6
    AD = lambda i: 8 + i
    vK = lambda h: 20 + h
    RAW = lambda w: 22 + 6 * w
    SRT = lambda i: 52 + 2 * i
    GAT = lambda i: 72 + 2 * (i % 5)
    XR = lambda i: 82 + 4 * (i % 2)
    PR = lambda i: 90 + 10 * (i % 2)
    TT = 110
    TM = 116
    PF = PR(1)
    vSA2 = 126
    sTot, sWin = 8, 9
    sNext, sRem, sPass, sFirst, sLeft, sMx = 32, 33, 34, 35, 16, 17
    WM = lambda w: 36 + 2 * w
    GM = lambda i: 46 + 2 * (i % 5)
    SC = 56

    def proc_pre(vKey, vC, R):
        g, la, c01, c2, t = R, R + 6, R + 7, R + 8, R + 9
        a(f"v_lshrrev_b32 v{la}, 16, v{vKey}")
        a(f"v_fmaak_f32 v{c01}, v{vC}, v{vC}, {f32(-0.5/KAP/KAP)}")
        a(f"v_and_b32 v{la}, 0xfff8, v{la}")
        a(f"v_add_f32 v{c2}, {f32(-0.25/KAP/KAP)}, v{c01}")
        a(f"v_add_u32 v{t}, v{la}, v{la}")
        if "nog" in EXP:
            a("ds_nop"); a("ds_nop")
        else:
            a(f"ds_read_b64 v[{g+4}:{g+5}], v{la} offset:{GB}")
            a(f"ds_read_b128 v[{g}:{g+3}], v{t} offset:{GA}")
        a(f"v_mul_f32 v{c2}, v{c2}, v{vC}")
        a(f"v_cvt_pk_bf16_f32 v{c01}, v{vC}, v{c01}")
    def proc_s(vM, R):
        g, la, c01, c2 = R, R + 6, R + 7, R + 8
        a(f"v_lshlrev_b32 v{TT}, 16, v{g+4}")
        a(f"v_mul_f32 v{TT+1}, v{g+4}, v{c2}")
        a(f"v_lshlrev_b32 v{TT+2}, 16, v{g+5}")
        a(f"v_mul_f32 v{TT+3}, v{g+5}, v{c2}")
        a(f"v_mul_f32 v{TT}, v{TT}, v{c2}")
        a(f"v_mul_f32 v{TT+2}, v{TT+2}, v{c2}")
        for d in (1, 3, 0, 2):
            a(f"v_dot2c_f32_bf16 v{TT+d}, v{g+d}, v{c01}")
        a(f"v_lshlrev_b32 v{TT+4}, 16, v{vM}")
        a(f"v_lshlrev_b32 v{TT+5}, 16, v{vM+1}")
    mdreg = lambda vM, d: (TT + 4, vM, TT + 5, vM + 1)[d]
    def sticky(X):
        a(f"v_bitop3_b32 v{vSticky}, v{vSticky}, v{X}, v{X+1} bitop3:0xfe")
        a(f"v_bitop3_b32 v{vSticky}, v{vSticky}, v{X+2}, v{X+3} bitop3:0xfe")
    def proc_post(vM, R, X):
        la = R + 6
        proc_s(vM, R)
        for d in (1, 3, 0, 2):
            a(f"v_fmaak_f32 v{X+d}, v{mdreg(vM, d)}, v{TT+d}, {MAGIC:#x}")
        a(f"v_lshl_add_u64 v[{X}:{X+1}], v[{X}:{X+1}], 0, v[{vNegM}:{vNegM+1}]")
        a(f"v_lshl_add_u64 v[{X+2}:{X+3}], v[{X+2}:{X+3}], 0, v[{vNegM}:{vNegM+1}]")
        if "noatom" in EXP:
            a("ds_nop"); a("ds_nop")
            for d in range(4): a(f"v_mov_b32 v{X+d}, 0")
        else:
            a(f"ds_add_rtn_u64 v[{X}:{X+1}], v{la}, v[{X}:{X+1}] offset:{AC01}")
            a(f"ds_add_rtn_u64 v[{X+2}:{X+3}], v{la}, v[{X+2}:{X+3}] offset:{AC23}")
    def table_load(vD, vP, t):
        a("s_lshl_b32 s4, s6, 5")
        a(f"v_and_or_b32 v{t}, v{vLane}, 31, s4")
        a(f"v_lshrrev_b32 v{t+1}, 1, v{t}")
        a(f"v_lshlrev_b32 v{t+1}, 13, v{t+1}")
        a(f"v_lshlrev_b32 v{t+2}, 4, v{t}")
        a(f"v_and_or_b32 v{t+1}, v{t+2}, 16, v{t+1}")
        a(f"v_lshrrev_b32 v{t+2}, 2, v{vLane}")
        a(f"v_and_or_b32 v{t+1}, v{t+2}, 8, v{t+1}")
        a("s_lshl_b32 s4, s3, 3")
        a(f"buffer_load_dwordx2 v[{vP}:{vP+1}], v{t+1}, s[20:23], s4 offen")
        a(f"v_mul_u32_u24 v{vD}, {c.CS}, v{t}")
    def table_scan(vD, vP, vN, add):
        for i in range(2):
            a(f"v_and_b32 v{vN+2+i}, 0xffff, v{vP+i}")
            a(f"v_lshrrev_b32 v{vN+i}, 16, v{vP+i}")
            a(f"v_mov_b32 v{vP+i}, v{vN+i}")
        wave_scan(a, [vP, vP + 1])
        a(f"v_readlane_b32 s{sTot}, v{vP}, 63")
        a(f"v_add_u32 v{vD}, {add & 0xffffffff}, v{vD}")
        for i in range(2): a(f"v_add_u32 v{vN+2+i}, v{vN+2+i}, v{vN+i}")
        a(f"v_add_u32 v{vP+1}, s{sTot}, v{vP+1}")
        for i in range(2): a(f"v_sub_u32 v{vN+2+i}, v{vN+2+i}, v{vP+i}")
        a(f"v_readlane_b32 s{sTot}, v{vP+1}, 63")
        a(f"v_mad_i32_i24 v{vD+1}, v{vN+3}, 12, v{vD}")
        a(f"v_mad_i32_i24 v{vD}, v{vN+2}, 12, v{vD}")

    a("c_kernel:")
    a("s_cmp_ge_u32 s2, 256")
    a("s_cbranch_scc1 Lc_end")
    if "stamp" in EXP:
        a("s_mov_b32 m0, 0")
        a("v_mov_b32 v127, 0")
    rstamp(a, 62)
    stamp(a)
    a("s_setprio 3")
    a("s_load_dwordx2 s[10:11], s[0:1], 104")
    a("s_load_dwordx2 s[8:9], s[0:1], 24")
    a("s_and_b32 s3, s2, 7")
    a("s_lshl_b32 s3, s3, 5")
    a("s_lshr_b32 s4, s2, 3")
    a("s_or_b32 s3, s3, s4")
    a("s_lshl_b32 s3, s3, 2")
    Q = 112
    vD, vP, vN = Q + 2, Q + 4, Q + 6
    vDi, vMx, T2, Z = 90, 92, 96, 98
    RB = lambda h: XR(0) + 4 * h
    ST1 = lambda w: 104 + 4 * w
    a(f"v_lshrrev_b32 v{Q}, 6, v0")
    a(f"v_and_b32 v{vLane}, 63, v0")
    a(f"v_readfirstlane_b32 s6, v{Q}")
    a(f"v_mov_b32 v{Z+8}, 0")
    a(f"v_mov_b32 v{Z+9}, 0")
    a(f"v_lshlrev_b32 v{Q}, 3, v0")
    a(f"ds_write_b64 v{Q}, v[{Z+8}:{Z+9}] offset:{HIST}")
    a(f"v_add_u32 v{Q}, 1024, v0")
    edge_of_slot(a, 0, vDi, T2)
    edge_of_slot(a, Q, vDi + 1, T2)
    a(f"v_lshlrev_b32 v{vDi}, 1, v{vDi}")
    a(f"v_lshlrev_b32 v{vDi+1}, 1, v{vDi+1}")
    a(f"s_mul_i32 s7, s6, {SCRW}")
    a(f"s_add_u32 s7, s7, {BUF}")
    a(f"v_lshl_add_u32 v{Q}, v{vLane}, 4, s7")
    for i in range(4): a(f"v_mov_b32 v{Z+i}, 12")
    a("s_waitcnt lgkmcnt(0)")
    srd(a, 20, 10, 11, WS_BYTES)
    table_load(vD, vP, vN)
    srd(a, 16, 8, 9, E * 2)
    a(f"buffer_load_ushort v{vDi}, v{vDi}, s[16:19], 0 offen")
    a(f"buffer_load_ushort v{vDi+1}, v{vDi+1}, s[16:19], 0 offen")
    a(f"v_lshlrev_b32 v{T2}, 4, v{vLane}")
    a(f"s_mov_b32 s4, {MAXOFF}")
    a(f"buffer_load_dwordx4 v[{vMx}:{vMx+3}], v{T2}, s[20:23], s4 offen")
    for i in range(NWIN // 4):
        a(f"ds_write_b128 v{Q}, v[{Z}:{Z+3}] offset:{1024*i}")
    a(f"v_lshl_add_u32 v{Q+1}, v{vLane}, 2, s7")
    for i in range(NWIN // 4 * 4, NWIN):
        a(f"ds_write_b32 v{Q+1}, v{Z} offset:{256*i}")
    a("s_barrier")
    srd(a, 12, 10, 11, 4 * 131072, stride=8, off=MDOFF)
    a(f"s_add_u32 s24, s10, {WOFF}")
    a("s_addc_u32 s25, s11, 0")
    if 'stamp2' in EXP: stamp(a)
    a("s_waitcnt vmcnt(3)")
    if 'stamp2' in EXP: stamp(a)
    table_scan(vD, vP, vN, RECOFF - MARK)
    a(f"s_movk_i32 s4, {NWIN*64}")
    for i in range(2):
        a(f"v_sub_u32 v{vN+i}, v{vP+i}, v{vN+i}")
        a(f"v_lshl_add_u32 v{vN+2}, v{vN+i}, 2, s7")
        a(f"v_lshl_add_u32 v{vN+3}, v{vP+i}, 2, s7")
        a(f"v_cmpx_gt_u32 vcc, s4, v{vN+i}")
        a(f"ds_add_u32 v{vN+2}, v{vD+i}")
        a(f"v_cmpx_gt_u32 vcc, s4, v{vP+i}")
        a(f"ds_sub_u32 v{vN+3}, v{vD+i}")
        a("s_mov_b64 exec, -1")
    WA = [GAT(0) + i for i in range(10)] + [AD(i) for i in range(12)]
    for i in range(2 * NW):
        a(f"ds_read_b32 v{WA[i]}, v{Q+1} offset:{256*i}")
    a(f"s_add_u32 s{sWin}, s{sTot}, 63")
    a(f"s_lshr_b32 s{sWin}, s{sWin}, 6")
    a(f"s_min_u32 s{sLeft}, s{sTot}, {NW*NBATCH*64}")
    a(f"s_mov_b32 s5, {MARK-12:#x}")
    def addr_scan(regs):
        wave_scan(a, regs)
        for k, v in enumerate(regs): a(f"v_readlane_b32 s{SC+k}, v{v}, 63")
        for k, v in enumerate(regs):
            a(f"v_add_u32 v{v}, s5, v{v}")
            a(f"s_add_u32 s5, s5, s{SC+k}")
    def raw_load(w, va, dst=None):
        dst = RAW(w) if dst is None else dst
        a(f"buffer_load_dwordx3 v[{dst}:{dst+2}], v{va}, s[20:23], 0 offen{c.rec}")
    a(f"s_waitcnt lgkmcnt({NW})")
    if 'stamp2' in EXP: stamp(a)
    addr_scan(WA[0:5])
    a("s_load_dwordx8 s[28:35], s[24:25], 768")
    a("s_load_dwordx16 s[36:51], s[24:25], 256")
    for w in range(NW): raw_load(w, WA[w])
    stamp(a)
    a("s_setprio 1")
    for i in range(2 * NW, NWIN):
        a(f"ds_read_b32 v{WA[i]}, v{Q+1} offset:{256*i}")
    for i in range(4): a(f"v_mov_b32 v{Z+4+i}, {AINIT:#x}")
    a(f"v_lshlrev_b32 v{Q}, 4, v0")
    a(f"ds_write_b128 v{Q}, v[{Z+4}:{Z+7}] offset:{AC01}")
    a(f"v_lshlrev_b32 v{Q}, 2, v0")
    a(f"ds_write_b32 v{Q}, v{Z+4} offset:{AC01+16384}")
    a(f"s_mul_i32 s4, s6, {512 if L0 else NW*128*8}")
    a(f"s_add_u32 s4, s4, {BUF}")
    a(f"v_lshl_add_u32 v{vSA}, v{vLane}, 3, s4")
    a(f"v_add_u32 v{vSA2}, 0x10000, v{vSA}")
    a(f"v_mov_b32 v{vEight}, 8")
    a(f"v_mov_b32 v{vSticky}, 0")
    a(f"v_mov_b32 v{vNegM}, {(-MAGIC) & 0xffffffff:#x}")
    a(f"v_mov_b32 v{vNegM+1}, {(~MAGIC) & 0xffffffff:#x}")
    a(f"s_waitcnt vmcnt({NW}) lgkmcnt(0)")
    addr_scan(WA[5:10])
    a("s_load_dwordx16 s[52:67], s[24:25], 0")
    a("s_load_dwordx16 s[68:83], s[24:25], 64")
    a("s_load_dwordx16 s[84:99], s[24:25], 128")
    a(f"v_max3_u32 v{vMx}, v{vMx}, v{vMx+1}, v{vMx+2}")
    a(f"v_max_u32 v{vMx}, v{vMx}, v{vMx+3}")
    wave_scan(a, vMx, "v_max_u32")
    a(f"v_readlane_b32 s{sMx}, v{vMx}, 63")
    def early(h):
        a(f"v_lshlrev_b32 v{vDi+h}, 16, v{vDi+h}")
        rbf_pairs(a, vDi + h, RB(h), T2, 28)
        for i in range(4):
            for d in range(4):
                a(f"v_dot2_f32_bf16 v{Z+d}, v{RB(h)+i}, s{36+4*i+d}, {'0' if i == 0 else 'v%d' % (Z+d)}")
        a(f"v_lshlrev_b32 v{T2}, 3, v0")
        if h: a(f"v_add_u32 v{T2}, 8192, v{T2}")
        a(f"v_cvt_pk_bf16_f32 v{Z}, v{Z}, v{Z+1}")
        a(f"v_cvt_pk_bf16_f32 v{Z+1}, v{Z+2}, v{Z+3}")
        a(f"ds_write_b64 v{T2}, v[{Z}:{Z+1}] offset:{GATE}")
    early(0)
    a("s_cmp_ge_u32 s6, 4")
    a("s_cbranch_scc1 Lc_e2skip")
    early(1)
    a("Lc_e2skip:")
    a("s_waitcnt lgkmcnt(0)")
    stamp(a)
    GG, T3 = 90, 102
    def late(h):
        R = RB(h)
        for i in range(4):
            for k in range(12):
                a(f"v_dot2_f32_bf16 v{GG+k}, v{R+i}, s{52+12*i+k}, {'0' if i == 0 else 'v%d' % (GG+k)}")
        for d in range(4):
            a(f"v_add_f32 v{R+d}, |v{GG+d}|, |v{GG+4+d}|")
        for d in range(4):
            a(f"v_add_f32 v{R+d}, v{R+d}, |v{GG+8+d}|")
        a(f"v_max3_f32 v{R}, v{R}, v{R+1}, v{R+2}")
        a(f"v_max_f32 v{R}, v{R}, v{R+3}")
        a(f"v_mul_f32 v{R}, {f32(1.03)}, v{R}")
        a(f"v_mul_f32 v{R+1}, s{sMx}, v{R}")
        a(f"v_frexp_exp_i32_f32 v{R}, v{R}")
        a(f"v_frexp_exp_i32_f32 v{R+1}, v{R+1}")
        a(f"v_sub_u32 v{R}, 120, v{R}")
        a(f"v_sub_u32 v{R+1}, 22, v{R+1}")
        a(f"v_mov_b32 v{R+2}, 120")
        a(f"v_min3_i32 v{vK(h)}, v{R}, v{R+1}, v{R+2}")
        for l in range(3):
            a(f"v_mov_b32 v{R+l}, {f32((1, 2, 4)[l] * KAP ** (l+1))}")
            a(f"v_ldexp_f32 v{R+l}, v{R+l}, v{vK(h)}")
        for l in range(3):
            for d in range(4):
                a(f"v_mul_f32 v{GG+4*l+d}, v{R+l}, v{GG+4*l+d}")
        for d in range(4):
            a(f"v_cvt_pk_bf16_f32 v{GG+d}, v{GG+d}, v{GG+4+d}")
        pack_hi_aware(a, GG + 4, GG + 8, GG + 9, T3)
        pack_hi_aware(a, GG + 5, GG + 10, GG + 11, T3)
        a(f"v_lshlrev_b32 v{T3}, 4, v0")
        a(f"v_lshlrev_b32 v{T3+1}, 3, v0")
        a(f"ds_write_b128 v{T3}, v[{GG}:{GG+3}] offset:{GA + 16384*h}")
        a(f"ds_write_b64 v{T3+1}, v[{GG+4}:{GG+5}] offset:{GB + 8192*h}")

    def binaddr(dst, key):
        a(f"v_lshrrev_b32 v{dst}, 4, v{key}")
        a(f"v_and_b32 v{dst}, 0x1ffc, v{dst}")
    def hist(w):
        r = RAW(w)
        binaddr(r + 4, r); binaddr(r + 5, r + 2)
        a(f"v_cmpx_gt_i32_e64 s[{WM(w)}:{WM(w)+1}], s{sLeft}, v{vLane}")
        a(f"ds_add_rtn_u32 v{r+4}, v{r+4}, v{vEight} offset:{HIST}")
        a(f"ds_add_rtn_u32 v{r+5}, v{r+5}, v{vEight} offset:{HIST}")
        a("s_mov_b64 exec, -1")
        a(f"s_sub_u32 s{sLeft}, s{sLeft}, 64")
    def cvt_c(r):
        a(f"v_cvt_f32_i32_sdwa v{r+3}, sext(v{r+1}) dst_sel:DWORD dst_unused:UNUSED_PAD src0_sel:WORD_1")
        a(f"v_cvt_f32_i32_sdwa v{r+1}, sext(v{r+1}) dst_sel:DWORD dst_unused:UNUSED_PAD src0_sel:WORD_0")
    def base_read(w, t=TM):
        r = RAW(w)
        binaddr(t, r); binaddr(t + 1, r + 2)
        a(f"ds_read_b32 v{t}, v{t} offset:{BASE}")
        a(f"ds_read_b32 v{t+1}, v{t+1} offset:{BASE}")
        cvt_c(r)
    def scatter(w, t=TM):
        r = RAW(w)
        a(f"v_sub_u32 v{r+4}, v{t}, v{r+4}")
        a(f"v_sub_u32 v{r+5}, v{t+1}, v{r+5}")
        a(f"s_mov_b64 exec, s[{WM(w)}:{WM(w)+1}]")
        a(f"ds_write_b64 v{r+4}, v[{r}:{r+1}]")
        a(f"ds_write_b64 v{r+5}, v[{r+2}:{r+3}]")
        a("s_mov_b64 exec, -1")
    def prefix(Cn):
        X = Cn + 20
        a(f"v_mul_u32_u24 v{X}, 80, v{vLane}")
        for i in range(0, 20, 4):
            a(f"ds_read_b128 v[{Cn+i}:{Cn+i+3}], v{X} offset:{HIST+4*i}")
        for i in range(4): a(f"v_mov_b32 v{X+2+i}, 0")
        a("s_waitcnt lgkmcnt(0)")
        a(f"v_writelane_b32 v{Cn}, 0, 0")
        for i in range(1, 20):
            a(f"v_add_u32 v{Cn+i}, v{Cn+i}, v{Cn+i-1}")
        a(f"v_mov_b32 v{X+1}, v{Cn+19}")
        wave_scan(a, X + 1)
        a(f"v_sub_u32 v{X+1}, v{X+1}, v{Cn+19}")
        a(f"v_add_u32 v{X+1}, {BUF-8}, v{X+1}")
        for i in range(20):
            a(f"v_add_u32 v{Cn+i}, v{Cn+i}, v{X+1}")
        a(f"s_mov_b32 s4, {MARK:#x}")
        a(f"v_writelane_b32 v{Cn}, s4, 0")
        for i in range(0, 20, 4):
            a(f"ds_write_b128 v{X}, v[{Cn+i}:{Cn+i+3}] offset:{BASE+4*i}")
        for i in range(0, 20, 4):
            a(f"ds_write_b128 v{X}, v[{X+2}:{X+5}] offset:{HIST+4*i}")
        a("s_waitcnt lgkmcnt(5)")
    def total_read():
        a(f"ds_read_b32 v{vTot}, v{vEight} offset:{BASE+4*1279-8}")
    def total_take():
        a(f"v_readfirstlane_b32 s{sNext}, v{vTot}")
        a(f"s_sub_u32 s{sNext}, s{sNext}, {BUF-8}")
        a(f"s_lshr_b32 s{sNext}, s{sNext}, 3")
        a(f"s_mul_i32 s4, s6, {64 if L0 else NW*128}")
        a(f"s_sub_u32 s{sNext}, s{sNext}, s4")
    def slot_read(i):
        if L0: a(f"ds_read_b64 v[{SRT(i)}:{SRT(i)+1}], v{vSA if i < 8 else vSA2} offset:{8192*(i%8)}")
        else: a(f"ds_read_b64 v[{SRT(i)}:{SRT(i)+1}], v{vSA} offset:{512*i}")
    def gather(i):
        a(f"v_and_b32 v{GAT(i)}, 0x7ffff, v{SRT(i)}")
        if "nogather" in EXP: a(f"v_mov_b32 v{GAT(i)}, {BIAS}")
        a(f"v_cmpx_gt_i32_e64 s[{GM(i)}:{GM(i)+1}], s{sRem}, v{vLane}")
        a(f"buffer_load_dwordx2 v[{GAT(i)}:{GAT(i)+1}], v{GAT(i)}, s[12:15], 0 idxen")
        a("s_mov_b64 exec, -1")
        a(f"s_sub_u32 s{sRem}, s{sRem}, {1024 if L0 else 64}")
    def pre(i): proc_pre(SRT(i), SRT(i) + 1, PR(i))
    def post(i, vm, lg):
        a(f"s_waitcnt vmcnt({vm}) lgkmcnt({lg})")
        sticky(XR(i))
        a(f"s_mov_b64 exec, s[{GM(i)}:{GM(i)+1}]")
        proc_post(GAT(i), PR(i), XR(i))
        a("s_mov_b64 exec, -1")
    def prio(p):
        if "noprio" not in EXP: a(f"s_setprio {p}")
    PW = 15
    prio(2)
    for w in range(NW):
        a(f"s_waitcnt vmcnt({NW-1-w})")
        hist(w)
    a("s_waitcnt lgkmcnt(0)")
    stamp(a)
    a("s_barrier")
    stamp(a)
    a(f"s_cmp_lg_u32 s6, {PW}")
    a("s_cbranch_scc1 Lc_pfx0")
    prio(3)
    prefix(PF)
    a("s_barrier")
    a("s_waitcnt lgkmcnt(0)")
    a("Lc_pfx0:")
    for w in range(2): raw_load(w, WA[5 + w], ST1(w))
    a(f"s_cmp_eq_u32 s6, {PW}")
    a("s_cbranch_scc1 Lc_pfx1")
    a("s_barrier")
    a("Lc_pfx1:")
    stamp(a)
    total_read()
    for w in range(NW): base_read(w, SRT(w))
    for w in range(NW):
        a(f"s_waitcnt lgkmcnt({2*(NW-1)})")
        scatter(w, SRT(w))
        if w in (1, 2, 3): raw_load(w + 1, WA[6 + w], ST1(w + 1))
    total_take()
    a(f"s_mov_b32 s{sPass}, {NBATCH}")
    a(f"s_mov_b32 s{sFirst}, 1")
    a("s_waitcnt lgkmcnt(0)")
    real = a.lines
    sc = Sched(a)
    def Pre(i): pre(i); sc.ds(("G", i), 2)
    def Slot(i): slot_read(i); sc.ds(("S", i))
    def Gather(i): sc.need(l=[("S", i)]); gather(i); sc.vm(("g", i))
    def PreS(i): sc.need(l=[("S", i)]); Pre(i)
    def Post(i, tag=None, also=()):
        t = i if tag is None else tag
        sc.need(v=[("g", t)] + list(also), l=[("G", t), ("A", i % 2)])
        sticky(XR(i))
        a(f"s_mov_b64 exec, s[{GM(i)}:{GM(i)+1}]")
        proc_post(GAT(i), PR(i), XR(i))
        a("s_mov_b64 exec, -1")
        sc.ds(("A", i % 2), 2)
    def Hist(w): sc.need(v=[("R", w)]); hist(w); sc.ds(("H", w), 2)
    def Base(w, t=TM): base_read(w, t); sc.ds(("B", w), 2)
    def Scat(w, t=TM): sc.need(l=[("B", w)]); scatter(w, t); sc.ds(("W", w), 2)
    def Raw(w, mask=None):
        if mask is not None: a(f"s_mov_b64 exec, s[{mask}:{mask+1}]")
        raw_load(w, AD(w)); sc.vm(("R", w))
        if mask is not None: a("s_mov_b64 exec, -1")
    def scan_next(lbl):
        a(f"s_cmp_eq_u32 s{sPass}, 0")
        a(f"s_cbranch_scc1 {lbl}")
        addr_scan([AD(i) for i in range(5)])
        a(f"{lbl}:")
    def body():
        a("Lc_loop:")
        stamp(a)
        a("s_barrier")
        stamp(a)
        a(f"s_sub_u32 s{sPass}, s{sPass}, 1")
        a(f"s_cmp_lt_i32 s{sPass}, 0")
        a("s_cbranch_scc1 Lc_tail")
        body.tail = sc.copy(a)
        prio(2)
        a(f"s_mov_b32 s{sRem}, s{sNext}")
        for i in range(7): Slot(i)
        a(f"s_cmp_eq_u32 s{sFirst}, 1")
        a("s_cbranch_scc1 Lc_first")
        Gather(0)
        a(f"s_cmp_lg_u32 s6, {PW}")
        a("s_cbranch_scc1 Lc_nopfx")
        prio(3)
        prefix(PF)
        a("Lc_nopfx:")
        Pre(7); Slot(7)
        Post(6); Gather(1)
        lprio(1)
        Pre(8); Slot(8)
        Post(7); Gather(2)
        lprio(0)
        Pre(9); Slot(9)
        scan_next("Lc_noscan")
        Post(8); Gather(3)
        sc.need(l=[("S", 9)])
        a("Lc_joined:")
        stamp(a)
        a("s_barrier")
        stamp(a)
        prio(3)
        total_read(); sc.ds("T")
        Base(0)
        Pre(0)
        Post(9); Gather(4)
        sc.need(l=["T"]); total_take()
        Scat(0); Raw(0); Base(1)
        Pre(1)
        Scat(1); Raw(1); Base(2)
        Post(0); Gather(5)
        Scat(2); Raw(2); Base(3)
        prio(2)
        Pre(2)
        Scat(3); Raw(3); Base(4)
        Post(1); Gather(6)
        Scat(4); Raw(4)
        a(f"s_cmp_lt_u32 s{sPass}, 2")
        a("s_cbranch_scc1 Lc_noshift")
        for i in range(7): a(f"v_mov_b32 v{AD(i)}, v{AD(i+5)}")
        for i in range(7, 10): a(f"v_mov_b32 v{AD(i)}, 0")
        a("Lc_noshift:")
        Pre(3)
        Post(2); Gather(7)
        prio(1)
        Pre(4)
        Post(3); Gather(8)
        Hist(0); Hist(1)
        Pre(5)
        Post(4); Gather(9)
        prio(0)
        Hist(2); Hist(3)
        Pre(6)
        Hist(4)
        Post(5)
        a(f"s_mov_b32 s{sFirst}, 0")
        sc.need(l=[("H", 4)])
        a("s_branch Lc_loop")
    def lprio(p):
        if "noprio" in EXP: return
        lbl = a.label("c_lp")
        a(f"s_cmp_eq_u32 s6, {PW}")
        a(f"s_cbranch_scc1 {lbl}")
        a(f"s_setprio {p}")
        a(f"{lbl}:")
    a.lines = []
    body()
    a.lines = real
    body()
    a("Lc_first:")
    for i in range(7, 10): slot_read(i)
    a("s_waitcnt lgkmcnt(6)")
    gather(0); gather(1)
    for w in range(NW):
        a(f"s_waitcnt vmcnt({NW-1-w+2})")
        for i in range(3): a(f"v_mov_b32 v{RAW(w)+i}, v{ST1(w)+i}")
        hist(w)
    a("s_waitcnt lgkmcnt(0)")
    a("s_barrier")
    a(f"s_cmp_lg_u32 s6, {PW}")
    a("s_cbranch_scc1 Lc_first2")
    prio(3)
    prefix(PF)
    a("s_waitcnt lgkmcnt(0)")
    a("Lc_first2:")
    gather(2)
    late(0)
    a("s_cmp_ge_u32 s6, 4")
    a("s_cbranch_scc1 Lc_l2skip")
    late(1)
    a("Lc_l2skip:")
    gather(3)
    a(f"s_mov_b64 s[{GM(9)}:{GM(9)+1}], 0")
    for i in range(8): a(f"v_mov_b32 v{XR(0)+i}, 0")
    addr_scan([AD(i) for i in range(5)])
    a("s_waitcnt lgkmcnt(0)")
    a("s_branch Lc_joined")

    sc = body.tail
    a("Lc_tail:")
    a("s_load_dwordx2 s[60:61], s[0:1], 0")
    a("s_load_dwordx2 s[62:63], s[0:1], 88")
    a("s_load_dwordx8 s[64:71], s[24:25], 512")
    EP = AD(0)
    a(f"v_add_u32 v{TM}, 1024, v0")
    for h in range(2):
        e = EP + 4 * h
        edge_of_slot(a, 0 if h == 0 else TM, e + 2, e + 3)
        a(f"v_lshlrev_b32 v{e+2}, 3, v{e+2}")
    Pre(7)
    sc.drain_l()
    srd(a, 28, 60, 61, E * 8)
    for h in range(2):
        e = EP + 4 * h
        a(f"buffer_load_dwordx2 v[{e}:{e+1}], v{e+2}, s[28:31], 0 offen"); sc.vm("m")
    Post(6)
    def xgather(r, k):
        sc.need(v=[("R", k)])
        cvt_c(r)
        for h in range(2):
            a(f"v_and_b32 v{GAT(h)}, 0x7ffff, v{r+2*h}")
            a(f"v_cmpx_ne_u32_e64 s[{GM(h)}:{GM(h)+1}], 0, v{r+2*h}")
            a(f"buffer_load_dwordx2 v[{GAT(h)}:{GAT(h)+1}], v{GAT(h)}, s[12:15], 0 idxen"); sc.vm(("g", "x", k, h))
            a("s_mov_b64 exec, -1")
    def XPre(r, k, h): proc_pre(r + 2 * h, r + 2 * h + 1, PR(h)); sc.ds(("G", "x", k, h), 2)
    def XPost(k, h):
        sc.need(v=[("g", "x", k, h)], l=[("G", "x", k, h), ("A", h)])
        sticky(XR(h))
        a(f"s_mov_b64 exec, s[{GM(h)}:{GM(h)+1}]")
        proc_post(GAT(h), PR(h), XR(h))
        a("s_mov_b64 exec, -1")
        sc.ds(("A", h), 2)
    srd(a, 28, 62, 63, E * 8)
    xgather(RAW(0), 0)
    Pre(8); Post(7)
    Pre(9); Post(8)
    XPre(RAW(0), 0, 0)
    Post(9)
    a(f"s_cmp_le_u32 s{sWin}, {NW*NBATCH}")
    a("s_cbranch_scc1 Lc_nox")
    XPre(RAW(0), 0, 1)
    XPost(0, 0); XPost(0, 1)
    a(f"s_cmp_le_u32 s{sWin}, {NW*NBATCH+1}")
    a("s_cbranch_scc1 Lc_nox")
    xgather(RAW(1), 1)
    XPre(RAW(1), 1, 0); XPre(RAW(1), 1, 1)
    XPost(1, 0); XPost(1, 1)
    a("Lc_nox:")
    a("s_waitcnt vmcnt(0) lgkmcnt(0)")
    sticky(XR(0)); sticky(XR(1))
    a(f"v_cmp_gt_i32 vcc, 0, v{vSticky}")
    a(f"s_cmp_gt_u32 s{sWin}, {NWIN}")
    a("s_cselect_b32 s5, 1, 0")
    a("s_cmp_lg_u64 vcc, 0")
    a("s_cselect_b32 s4, 2, 0")
    a("s_or_b32 s4, s4, s5")
    a("s_cbranch_scc0 Lc_noflag")
    a(f"v_mov_b32 v{TM}, s4")
    a(f"ds_or_b32 v{vEight}, v{TM} offset:{FLAG-8}")
    a("s_waitcnt lgkmcnt(0)")
    a("Lc_noflag:")
    stamp(a)
    a("s_barrier")
    stamp(a)
    AC, GT = SRT(0), SRT(4)
    a(f"ds_read_b32 v{TM}, v{vEight} offset:{FLAG-8}")
    a(f"v_lshlrev_b32 v{TM+1}, 3, v0")
    a(f"v_add_u32 v{TT}, 8192, v{TM+1}")
    for h in range(2):
        va = TT if h else TM + 1
        a(f"ds_read_b64 v[{AC+4*h}:{AC+4*h+1}], v{va} offset:{AC01}")
        a(f"ds_read_b64 v[{AC+4*h+2}:{AC+4*h+3}], v{va} offset:{AC23}")
        a(f"ds_read_b64 v[{GT+2*h}:{GT+2*h+1}], v{va} offset:{GATE}")
    a("s_waitcnt lgkmcnt(0)")
    a(f"v_readfirstlane_b32 s7, v{TM}")
    for i in range(8):
        a(f"v_subrev_u32 v{AC+i}, {AINIT:#x}, v{AC+i}")
        a(f"v_cvt_f32_i32 v{AC+i}, v{AC+i}")
    a("s_cmp_lg_u32 s7, 0")
    a("s_cbranch_scc1 Lc_slow")
    a("Lc_fin:")
    UP, UN = SRT(6), SRT(8)
    def unpack(dst, src):
        for d in range(4):
            if d & 1: a(f"v_and_b32 v{dst+d}, 0xffff0000, v{src+d//2}")
            else: a(f"v_lshlrev_b32 v{dst+d}, 16, v{src+d//2}")
    def fin_slot(h):
        e, ac = EP + 4 * h, AC + 4 * h
        a(f"v_sub_u32 v{UP}, 0, v{vK(h)}")
        for d in range(4): a(f"v_ldexp_f32 v{ac+d}, v{ac+d}, v{UP}")
        a(f"v_cvt_pk_bf16_f32 v{ac}, v{ac}, v{ac+1}")
        a(f"v_cvt_pk_bf16_f32 v{ac+1}, v{ac+2}, v{ac+3}")
        for i in range(2):
            for d in range(4):
                a(f"v_dot2_f32_bf16 v{UP+d}, v{ac+i}, s{64+4*i+d}, {'0' if i == 0 else 'v%d' % (UP+d)}")
        unpack(UN, GT + 2 * h)
        for d in range(4): a(f"v_cvt_pk_bf16_f32 v{UP+d}, 0, v{UP+d}")
        for d in range(4): a(f"v_mul_f32 v{UP+d}, v{UP+d}, v{UN+d}")
        for d in range(4): a(f"v_cvt_pk_bf16_f32 v{UP+d}, 0, v{UP+d}")
        unpack(UN, e)
        for d in range(4): a(f"v_add_f32 v{UP+d}, v{UP+d}, v{UN+d}")
        a(f"v_cvt_pk_bf16_f32 v{e}, v{UP}, v{UP+1}")
        a(f"v_cvt_pk_bf16_f32 v{e+1}, v{UP+2}, v{UP+3}")
        a(f"buffer_store_dwordx2 v[{e}:{e+1}], v{e+2}, s[28:31], 0 offen")
    fin_slot(0)
    a("s_cmp_ge_u32 s6, 4")
    a("s_cbranch_scc1 Lc_done")
    fin_slot(1)
    a("Lc_done:")
    if "stamp" in EXP:
        stamp(a)
        rstamp(a, 63)
        a("s_lshl_b32 s4, s2, 12")
        a(f"s_add_u32 s4, s4, {STAMP_OFF}")
        a("v_lshlrev_b32 v126, 2, v0")
        a("buffer_store_dword v127, v126, s[20:23], s4 offen")
    a("Lc_end:")
    a("s_endpgm")

    a("Lc_slow:")
    sD, sP, sN = RAW(1), RAW(1) + 2, RAW(1) + 4
    vL12, vAD = RAW(3), RAW(3) + 1
    sJ, sNx, sW0, sDc, sOff = 36, 37, 38, 39, 40
    table_load(sD, sP, sN)
    Z = PR(0)
    for i in range(4): a(f"v_mov_b32 v{Z+i}, 0")
    a(f"v_lshlrev_b32 v{TM}, 4, v0")
    a(f"v_add_u32 v{TM}, {BUF}, v{TM}")
    for i in range(3): a(f"ds_write_b128 v{TM}, v[{Z}:{Z+3}] offset:{16384*i}")
    a(f"v_mul_u32_u24 v{vL12}, 12, v{vLane}")
    a("s_waitcnt vmcnt(0)")
    table_scan(sD, sP, sN, RECOFF)
    a(f"s_mov_b32 s{sJ}, 0")
    a(f"s_mov_b32 s{sNx}, 0")
    a(f"s_mov_b32 s{sDc}, {MARK:#x}")
    a("s_bitcmp1_b32 s7, 1")
    a(f"s_cselect_b32 s4, 0, {NWIN}")
    a("s_cbranch_scc0 Lc_slow_keep")
    for i in range(8): a(f"v_mov_b32 v{AC+i}, 0")
    a("Lc_slow_keep:")
    a(f"s_lshl_b32 s{sW0}, s4, 6")
    a(f"s_sub_u32 s{sW0}, s{sW0}, 64")
    a(f"s_sub_u32 s{sWin}, s{sWin}, s4")
    a("s_waitcnt lgkmcnt(0)")
    a("s_barrier")
    a("Lc_slow_loop:")
    a(f"s_cmp_le_i32 s{sWin}, 0")
    a("s_cbranch_scc1 Lc_slow_done")
    a(f"s_sub_u32 s{sWin}, s{sWin}, 1")
    a(f"s_add_u32 s{sW0}, s{sW0}, 64")
    a(f"s_mul_i32 s{sOff}, s{sW0}, 12")
    a(f"v_add_u32 v{vAD}, s{sDc}, v{vL12}")
    a("Lc_run:")
    a(f"s_sub_u32 s4, s{sNx}, s{sW0}")
    a("s_cmp_ge_i32 s4, 64")
    a("s_cbranch_scc1 Lc_built")
    a("s_max_i32 s4, s4, 0")
    a(f"s_cmp_lg_u32 s{sJ}, 64")
    a("s_cbranch_scc1 Lc_cont")
    a("s_mov_b64 exec, -1")
    a(f"v_mov_b32 v{sD}, v{sD+1}")
    a(f"v_mov_b32 v{sP}, v{sP+1}")
    a(f"v_mov_b32 v{sD+1}, {MARK:#x}")
    a(f"v_mov_b32 v{sP+1}, 0x7fffffff")
    a(f"s_mov_b32 s{sJ}, 0")
    a("Lc_cont:")
    a(f"v_readlane_b32 s{sDc}, v{sD}, s{sJ}")
    a(f"v_readlane_b32 s{sNx}, v{sP}, s{sJ}")
    a("s_lshl_b64 exec, -1, s4")
    a(f"s_add_u32 s{sJ}, s{sJ}, 1")
    a(f"v_add_u32 v{vAD}, s{sDc}, v{vL12}")
    a("s_branch Lc_run")
    a("Lc_built:")
    a("s_mov_b64 exec, -1")
    r = RAW(0)
    a(f"buffer_load_dwordx3 v[{r}:{r+2}], v{vAD}, s[20:23], s{sOff} offen")
    a("s_waitcnt vmcnt(0)")
    cvt_c(r)
    for h in range(2):
        a(f"v_and_b32 v{GAT(h)}, 0x7ffff, v{r+2*h}")
        a(f"buffer_load_dwordx2 v[{GAT(h)}:{GAT(h)+1}], v{GAT(h)}, s[12:15], 0 idxen")
    for h in range(2): proc_pre(r + 2 * h, r + 2 * h + 1, PR(h))
    a("s_waitcnt vmcnt(0) lgkmcnt(0)")
    for h in range(2):
        a(f"v_cmpx_ne_u32 vcc, 0, v{r+2*h}")
        proc_s(GAT(h), PR(h))
        a(f"v_add_u32 v{PR(h)+6}, {BUF}, v{PR(h)+6}")
        for d in range(4): a(f"v_mul_f32 v{TT+d}, v{mdreg(GAT(h), d)}, v{TT+d}")
        for d in range(4): a(f"v_cvt_f64_f32 v[{XR(0)+2*d}:{XR(0)+2*d+1}], v{TT+d}")
        for d in range(4): a(f"ds_add_f64 v{PR(h)+6}, v[{XR(0)+2*d}:{XR(0)+2*d+1}] offset:{d*SL*8}")
        a("s_mov_b64 exec, -1")
    a("s_branch Lc_slow_loop")
    a("Lc_slow_done:")
    a("s_waitcnt lgkmcnt(0)")
    a("s_barrier")
    a(f"v_lshlrev_b32 v{TM}, 3, v0")
    a(f"v_add_u32 v{TM}, {BUF}, v{TM}")
    for h in range(2):
        for d in range(4):
            a(f"ds_read_b64 v[{PR(0)+8*h+2*d}:{PR(0)+8*h+2*d+1}], v{TM} offset:{d*SL*8+8192*h}")
    a("s_waitcnt lgkmcnt(0)")
    for i in range(8):
        a(f"v_cvt_f32_f64 v{TM}, v[{PR(0)+2*i}:{PR(0)+2*i+1}]")
        a(f"v_add_f32 v{AC+i}, v{AC+i}, v{TM}")
    a("s_branch Lc_fin")
    return 128, 102

def desc(name, vgpr, sgpr):
    v4 = -(-vgpr // 4) * 4
    return f""".amdhsa_kernel {name}
  .amdhsa_next_free_vgpr {vgpr}
  .amdhsa_next_free_sgpr {sgpr}
  .amdhsa_accum_offset {v4}
  .amdhsa_group_segment_fixed_size 0
  .amdhsa_kernarg_size 112
  .amdhsa_user_sgpr_count 2
  .amdhsa_user_sgpr_kernarg_segment_ptr 1
  .amdhsa_system_sgpr_workgroup_id_x 1
  .amdhsa_float_denorm_mode_32 3
.end_amdhsa_kernel
"""

def build(c):
    ap, ac = Asm(), Asm()
    pv, ps = gen_P(ap, c)
    cv, cs = gen_C(ac, c)
    out = HEADER
    out += f"; @launch kernel=p_kernel grid=({c.PGRID},1,1) block=({c.PT},1,1) lds={c.PLDS}\n"
    out += f"; @launch kernel=c_kernel grid=(256,1,1) block=(1024,1,1) lds={CLDS}\n"
    out += '.amdgcn_target "amdgcn-amd-amdhsa--gfx950"\n.text\n'
    for name, body in (("p_kernel", ap), ("c_kernel", ac)):
        out += f".globl {name}\n.p2align 8\n.type {name},@function\n" + body.padded()
    out += '.section .rodata,"a"\n.p2align 6\n' + desc("p_kernel", pv, ps) + ".p2align 6\n" + desc("c_kernel", cv, cs)
    return out

if __name__ == "__main__":
    ap = argparse.ArgumentParser()
    ap.add_argument("-o", default=f"cdna_kernels/{NAME}.s")
    ap.add_argument("--ld", default="")
    ap.add_argument("--st", default="")
    ap.add_argument("--rec", default="")
    ap.add_argument("--exp", default="")
    x = ap.parse_args()
    EXP.update(x.exp.split(","))
    c = Cfg(ld=x.ld, st=x.st, rec=x.rec)
    open(x.o, "w").write(build(c))
```

```python
import sys, argparse, struct
from asmlib import Asm

T = 10240000
E = 320000
NAME = "standalone__molecular_angular_gemnet__graph"
HEADER = open("cdna_kernels/%s.s.ref" % NAME).read().split("; Override launch")[0]
WS_BYTES = 268435456
EXP = set()
MDOFF = 3 << 20
MAXOFF = 7 << 20
GOFF = 8 << 20
GSTR = 32 * 1280
RECOFF = 20 << 20
KAP = 1.0 / 32767.0
BIAS = 64
MARK = 0x40000000
MAGIC = 0x4B400000
STAMP_OFF = 0xC000000

def f32(x): return "0x%08x" % struct.unpack("<I", struct.pack("<f", x))[0]

def srd(a, d, lo, hi, nrec, stride=0, off=0):
    if off:
        a(f"s_add_u32 s{d}, s{lo}, {off}")
        a(f"s_addc_u32 s{d+1}, s{hi}, 0")
        a(f"s_and_b32 s{d+1}, s{d+1}, 0xffff")
    else:
        a(f"s_mov_b32 s{d}, s{lo}")
        a(f"s_and_b32 s{d+1}, s{hi}, 0xffff")
    if stride: a(f"s_or_b32 s{d+1}, s{d+1}, {stride << 16}")
    a(f"s_mov_b32 s{d+2}, {nrec}")
    a(f"s_mov_b32 s{d+3}, 0x00020000")

def wave_scan(a, regs, op="v_add_u32", halves=False):
    if isinstance(regs, int): regs = [regs]
    for sh in (1, 2, 4, 8):
        for v in regs: a(f"{op}_dpp v{v}, v{v}, v{v} row_shr:{sh} row_mask:0xf bank_mask:0xf bound_ctrl:0")
    for v in regs: a(f"{op}_dpp v{v}, v{v}, v{v} row_bcast:15 row_mask:0xa bank_mask:0xf")
    if halves: return
    for v in regs: a(f"{op}_dpp v{v}, v{v}, v{v} row_bcast:31 row_mask:0xc bank_mask:0xf")

def stamp(a, v=127):
    if "stamp" not in EXP: return
    a("s_memtime s[100:101]")
    a("s_waitcnt lgkmcnt(0)")
    a(f"v_writelane_b32 v{v}, s100, m0")
    a("s_add_u32 m0, m0, 1")

def rstamp(a, lane, v=127, flag="stamp"):
    if flag not in EXP: return
    a("s_memrealtime s[100:101]")
    a("s_waitcnt lgkmcnt(0)")
    a(f"v_writelane_b32 v{v}, s100, {lane}")

def pack_hi_aware(a, dst, lo, hi, t):
    a(f"v_cvt_pk_bf16_f32 v{t}, v{lo}, 0")
    a(f"v_and_b32 v{t+1}, 0x7fffffff, v{hi}")
    a(f"v_add_u32 v{t+1}, 0x8000, v{t+1}")
    a(f"v_sub_u32 v{t+1}, v{t+1}, v{t}")
    a(f"v_max_i32 v{t+1}, 0, v{t+1}")
    a(f"v_and_b32 v{t+1}, 0x7fff0000, v{t+1}")
    a(f"v_or_b32 v{t}, v{t}, v{t+1}")
    a(f"v_and_b32 v{t+1}, 0x80000000, v{hi}")
    a(f"v_or_b32 v{dst}, v{t}, v{t+1}")

def rbf_pairs(a, vd, dst, t, sc):
    for p in range(4):
        x, y, r = t, t + 1, dst + p
        a(f"v_subrev_f32 v{x}, s{sc+2*p}, v{vd}")
        a(f"v_subrev_f32 v{y}, s{sc+1+2*p}, v{vd}")
        for op in ("sq", "m10", "exp"):
            a(f"v_cvt_pk_bf16_f32 v{x}, 0, v{x}")
            a(f"v_cvt_pk_bf16_f32 v{y}, 0, v{y}")
            if op == "sq":
                a(f"v_mul_f32 v{x}, v{x}, v{x}")
                a(f"v_mul_f32 v{y}, v{y}, v{y}")
            elif op == "m10":
                a(f"v_mul_f32 v{x}, 0xc1200000, v{x}")
                a(f"v_mul_f32 v{y}, 0xc1200000, v{y}")
            else:
                a(f"v_mul_f32 v{x}, 0x3fb8aa3b, v{x}")
                a(f"v_mul_f32 v{y}, 0x3fb8aa3b, v{y}")
                a(f"v_exp_f32 v{x}, v{x}")
                a(f"v_exp_f32 v{y}, v{y}")
        a(f"v_cvt_pk_bf16_f32 v{r}, v{x}, v{y}")

def edge_of_slot(a, vslot, vdst, t):
    a(f"v_lshlrev_b32 v{t}, 8, v{vslot}")
    a(f"v_and_b32 v{t}, 0xfffffc00, v{t}")
    a(f"v_and_or_b32 v{vdst}, v{vslot}, 3, v{t}")
    a(f"v_or_b32 v{vdst}, s3, v{vdst}")

class Cfg:
    def __init__(s, ld="", st="", rec=""):
        s.NQ = 4
        s.n = 20000
        s.NC = T // s.n
        s.NB = 256 * s.NQ
        s.CS = -(-(s.n + s.NB) * 6 // 128) * 128
        s.ld = (" " + ld) if ld else ""
        s.st = (" " + st) if st else ""
        s.rec = (" " + rec) if rec else ""
        s.NMAX = 256
        s.side = " sc1" if "sidesc1" in EXP else ""
        s.PT = 1024

QC = (1 << 32) * 4 // E
QGAP = 131072 - E // 4

class VM:
    def __init__(s, a): s.a, s.q = a, []
    def issue(s, tag, text): s.a(text); s.q.append(tag)
    def wait(s, *tags):
        k = max(len(s.q) - 1 - s.q[::-1].index(t) for t in tags)
        s.a(f"s_waitcnt vmcnt({len(s.q) - 1 - k})")

class Sched:
    def __init__(s, a): s.a, s.v, s.l, s.vd, s.ld = a, [], [], 0, 0
    def vm(s, tag): s.v.append(tag)
    def ds(s, tag, n=1): s.l += [tag] * n
    def _cnt(s, q, done, tags, cap):
        ks = [len(q) - 1 - q[::-1].index(t) for t in tags if t in q]
        if not ks or max(ks) < done: return None, done
        n = min(len(q) - 1 - max(ks), cap)
        return n, len(q) - n
    def need(s, v=(), l=()):
        nv, s.vd = s._cnt(s.v, s.vd, v, 63)
        nl, s.ld = s._cnt(s.l, s.ld, l, 15)
        parts = ([f"vmcnt({nv})"] if nv is not None else []) + ([f"lgkmcnt({nl})"] if nl is not None else [])
        if parts: s.a("s_waitcnt " + " ".join(parts))
    def drain_l(s): s.a("s_waitcnt lgkmcnt(0)"); s.ld = len(s.l)
    def copy(s, a):
        t = Sched(a); t.v, t.l, t.vd, t.ld = list(s.v), list(s.l), s.vd, s.ld; return t

def gen_P(a, c):
    NB = c.NB
    HS = lambda s: s * NB * 4
    CUR = 2 * NB * 4
    MISC = 3 * NB * 4
    R0 = MISC + 32
    TSTG = R0 + (c.n + NB) * 6
    c.PLDS = TSTG + 8192
    c.PGRID = 256
    vO = lambda s, j: 4 + 50 * s + j
    vI = lambda s, j: 24 + 50 * s + j
    vA = lambda s, j: 44 + 50 * s + j
    S, X, TMP = 104, 120, 124
    vm = VM(a)
    a("p_kernel:")
    a("s_cmp_ge_u32 s2, 256")
    a("s_cbranch_scc1 Lp_end")
    pst = [0]
    def ps():
        if "pstamp" not in EXP: return
        a("s_memrealtime s[100:101]" if pst[0] in (0,) else "s_memtime s[100:101]")
        a("s_waitcnt lgkmcnt(0)")
        a(f"s_mov_b32 s{(32, 39)[pst[0]] if pst[0] < 2 else 64+pst[0]}, s100")
        if pst[0] == 2:
            a("s_mov_b32 s64, s32")
            a("s_mov_b32 s65, s39")
        pst[0] += 1
    ps(); ps()
    a("s_load_dwordx4 s[4:7], s[0:1], 8")
    a("s_load_dwordx2 s[8:9], s[0:1], 32")
    a("s_load_dwordx2 s[10:11], s[0:1], 104")
    a("s_load_dwordx2 s[44:45], s[0:1], 0")
    a("s_load_dwordx2 s[46:47], s[0:1], 72")
    a("s_load_dwordx4 s[64:67], s[0:1], 56")
    a("s_load_dwordx2 s[68:69], s[0:1], 24")
    a("s_load_dwordx2 s[70:71], s[0:1], 40")
    a("v_lshlrev_b32 v1, 4, v0")
    a("v_lshlrev_b32 v2, 3, v0")
    a(f"v_mov_b32 v{S}, 0")
    a(f"v_mov_b32 v{S+1}, 0")
    a(f"ds_write_b64 v2, v[{S}:{S+1}]")
    a(f"ds_write_b64 v2, v[{S}:{S+1}] offset:{MISC}")
    a("v_lshrrev_b32 v3, 6, v0")
    a("v_readfirstlane_b32 s33, v3")
    a("v_cmpx_gt_u32 vcc, 1000, v0")
    a("s_mul_i32 s34, s2, 160000")
    a("s_lshr_b32 s36, s34, 1")
    a("s_waitcnt lgkmcnt(0)")
    srd(a, 16, 6, 7, T * 4)
    srd(a, 12, 4, 5, T * 4)
    def ld(kind, s, g):
        if kind == "A":
            a(f"s_add_u32 s35, s36, {(5*s+g)*8000}")
            vm.issue(("A", s, g), f"buffer_load_dwordx2 v[{vA(s,2*g)}:{vA(s,2*g)+1}], v2, s[20:23], s35 offen{c.ld}")
        else:
            r, sr = (vO(s, 4*g), 16) if kind == "O" else (vI(s, 4*g), 12)
            a(f"s_add_u32 s35, s34, {(5*s+g)*16000}")
            vm.issue((kind, s, g), f"buffer_load_dwordx4 v[{r}:{r+3}], v1, s[{sr}:{sr+3}], s35 offen{c.ld}")
    ld("O", 0, 0); ld("I", 0, 0)
    a("s_load_dwordx8 s[56:63], s[46:47], 0")
    a("s_load_dwordx4 s[96:99], s[70:71], 0")
    srd(a, 48, 44, 45, E * 8)
    srd(a, 52, 68, 69, E * 2)
    M = S
    DI, RB, GG, T2 = vO(1, 0), vO(1, 2), vO(1, 6), vO(1, 22)
    a("s_lshl_b32 s3, s2, 2")
    a(f"v_add_u32 v{T2+1}, 1000, v0")
    edge_of_slot(a, 0, DI, T2)
    edge_of_slot(a, T2 + 1, DI + 1, T2)
    a(f"v_lshlrev_b32 v{DI}, 1, v{DI}")
    a(f"v_lshlrev_b32 v{DI+1}, 1, v{DI+1}")
    a("s_mul_i32 s41, s2, 10000")
    a("s_add_u32 s42, s41, 8000")
    vm.issue("d0", f"buffer_load_ushort v{DI}, v{DI}, s[52:55], 0 offen")
    vm.issue("d1", f"buffer_load_ushort v{DI+1}, v{DI+1}, s[52:55], 0 offen")
    vm.issue("m0", f"buffer_load_dwordx2 v[{M}:{M+1}], v2, s[48:51], s41 offen")
    vm.issue("m1", f"buffer_load_dwordx2 v[{M+2}:{M+3}], v2, s[48:51], s42 offen")
    ld("O", 0, 1); ld("I", 0, 1)
    srd(a, 20, 8, 9, T * 2)
    srd(a, 28, 10, 11, RECOFF)
    for s in range(2):
        d = (24, 52)[s]
        a(f"s_mul_i32 s37, s2, {2*c.CS}")
        a(f"s_add_u32 s37, s37, {RECOFF + s*c.CS}")
        a(f"s_add_u32 s{d}, s10, s37")
        a(f"s_addc_u32 s{d+1}, s11, 0")
        a(f"s_and_b32 s{d+1}, s{d+1}, 0xffff")
        a(f"s_mov_b32 s{d+3}, 0x00020000")
    a(f"s_mov_b32 s43, {QGAP}")
    a("s_waitcnt lgkmcnt(0)")
    for p in range(4):
        a(f"s_lshl_b32 s{88+2*p}, s{96+p}, 16")
        a(f"s_and_b32 s{89+2*p}, s{96+p}, 0xffff0000")
    a("s_barrier")
    def md_row(h):
        r = M + 2 * h
        for k in range(2):
            for d in range(4):
                op = "s_pack_hh_b32_b16" if d & 1 else "s_pack_ll_b32_b16"
                a(f"{op} s40, s{56 + 4*k + d//2}, s{58 + 4*k + d//2}")
                a(f"v_dot2_f32_bf16 v{M+4+d}, v{r+k}, s40, {'0' if k == 0 else 'v%d' % (M+4+d)}")
        a(f"s_mul_i32 s40, s2, 1250")
        a(f"s_add_u32 s40, s40, {1000*h}")
        a(f"v_add_u32 v{M+10}, s40, v0")
        a(f"v_max3_f32 v{M+11}, |v{M+4}|, |v{M+5}|, |v{M+6}|")
        a(f"v_max_f32 v{M+11}, v{M+11}, |v{M+7}|")
        a(f"v_mov_b32 v{M+12}, {MISC+8}")
        a(f"ds_max_u32 v{M+12}, v{M+11}")
        pack_hi_aware(a, r, M + 4, M + 5, M + 8)
        pack_hi_aware(a, r + 1, M + 6, M + 7, M + 8)
        a(f"v_mul_hi_u32_u24 v{M+8}, {QC}, v{M+10}")
        a(f"v_mad_u32_u24 v{M+10}, v{M+8}, s43, v{M+10}")
        a(f"v_lshlrev_b32 v{M+10}, 3, v{M+10}")
        a(f"s_mov_b32 s40, {MDOFF + BIAS*8}")
        a(f"buffer_store_dwordx2 v[{r}:{r+1}], v{M+10}, s[28:31], s40 offen{c.side}")
    def g_slot(h, fill):
        a(f"v_lshlrev_b32 v{DI+h}, 16, v{DI+h}")
        a("s_load_dwordx8 s[72:79], s[66:67], 0")
        a("s_load_dwordx4 s[80:83], s[66:67], 32")
        a("s_load_dwordx4 s[84:87], s[64:65], 0")
        rbf_pairs(a, DI + h, RB, T2, 88)
        for i in range(4):
            if i < len(fill): fill[i]()
            a("s_waitcnt lgkmcnt(0)")
            for l in range(4):
                for d in range(4):
                    op = "s_pack_hh_b32_b16" if d & 1 else "s_pack_ll_b32_b16"
                    x, y = (72 + 2*l, 72 + 2*(3+l)) if l < 3 else (84, 86)
                    a(f"{op} s40, s{x + d//2}, s{y + d//2}")
                    g = GG + 4 * l + d
                    a(f"v_dot2_f32_bf16 v{g}, v{RB+i}, s40, {'0' if i == 0 else 'v%d' % g}")
            if i < 3:
                a(f"s_load_dwordx8 s[72:79], s[66:67], {48*(i+1)}")
                a(f"s_load_dwordx4 s[80:83], s[66:67], {48*(i+1)+32}")
                a(f"s_load_dwordx4 s[84:87], s[64:65], {16*(i+1)}")
        R = RB
        for d in range(4): a(f"v_add_f32 v{R+d}, |v{GG+d}|, |v{GG+4+d}|")
        for d in range(4): a(f"v_add_f32 v{R+d}, v{R+d}, |v{GG+8+d}|")
        for d in range(4): a(f"v_cvt_pk_bf16_f32 v{GG+12+d}, 0, v{GG+12+d}")
        a(f"v_max3_f32 v{R}, v{R}, v{R+1}, v{R+2}")
        a(f"v_max_f32 v{R}, v{R}, v{R+3}")
        a(f"v_mul_f32 v{R}, {f32(1.03)}, v{R}")
        a(f"v_frexp_exp_i32_f32 v{R+3}, v{R}")
        a(f"v_sub_u32 v{T2}, 0, v{R+3}")
        for d in range(4): a(f"v_ldexp_f32 v{GG+12+d}, v{GG+12+d}, v{R+3}")
        for l in range(3):
            for d in range(4):
                a(f"v_ldexp_f32 v{GG+4*l+d}, v{GG+4*l+d}, v{T2}")
                a(f"v_mul_f32 v{GG+4*l+d}, {f32((1, 2, 4)[l] * KAP ** (l+1))}, v{GG+4*l+d}")
        for d in range(4): a(f"v_cvt_pk_bf16_f32 v{GG+d}, v{GG+d}, v{GG+4+d}")
        a(f"v_cvt_pk_bf16_f32 v{GG+12}, v{GG+12}, v{GG+13}")
        a(f"v_cvt_pk_bf16_f32 v{GG+13}, v{GG+14}, v{GG+15}")
        pack_hi_aware(a, GG + 4, GG + 8, GG + 9, T2)
        pack_hi_aware(a, GG + 5, GG + 10, GG + 11, T2)
        a(f"s_mul_i32 s40, s2, {GSTR}")
        a(f"s_add_u32 s41, s40, {GOFF + 16000*h}")
        a(f"buffer_store_dwordx4 v[{GG}:{GG+3}], v1, s[28:31], s41 offen{c.side}")
        a(f"s_add_u32 s41, s40, {GOFF + 16*1280 + 8000*h}")
        a(f"buffer_store_dwordx2 v[{GG+4}:{GG+5}], v2, s[28:31], s41 offen{c.side}")
        a(f"s_add_u32 s41, s40, {GOFF + 24*1280 + 8000*h}")
        a(f"buffer_store_dwordx2 v[{GG+12}:{GG+13}], v2, s[28:31], s41 offen{c.side}")
    L = lambda k, s, g: (lambda: ld(k, s, g))
    PP = lambda p: (a(f"s_setprio {p}") if "pnoprio" not in EXP else None)
    PP(3)
    vm.wait("m1")
    md_row(0)
    ld("O", 0, 2)
    PP(2)
    g_slot(0, [L("I", 0, 2), L("O", 0, 3), lambda: (ld("I", 0, 3), PP(1))])
    ld("O", 0, 4)
    a("s_cmp_ge_u32 s33, 5")
    a("s_cbranch_scc1 Lp_nomd")
    a("v_cmpx_gt_u32 vcc, 280, v0")
    g_slot(1, [])
    a("v_cmpx_gt_u32 vcc, 250, v0")
    a("s_cbranch_execz Lp_nomd2")
    md_row(1)
    a("Lp_nomd2:")
    a("s_mov_b64 exec, -1")
    a("Lp_nomd:")
    ld("I", 0, 4)
    PP(0)
    ps()

    def hist(s, g):
        vm.wait(("O", s, g), ("I", s, g))
        a("v_mov_b32 v3, 1")
        for j in range(4*g, 4*g + 4):
            o, i, t, u = vO(s, j), vI(s, j), TMP + (j & 1) * 2, TMP + 1 + (j & 1) * 2
            a(f"v_lshrrev_b32 v{t}, 8, v{o}")
            a(f"v_mul_hi_u32_u24 v{u}, {QC}, v{i}")
            a(f"v_add_u32 v{i}, {BIAS}, v{i}")
            a(f"v_bfi_b32 v{t}, 3, v{o}, v{t}")
            a(f"v_and_b32 v{u}, 3, v{u}")
            a(f"v_and_b32 v{o}, 0x3fc, v{o}")
            a(f"v_mad_u32_u24 v{i}, v{u}, s43, v{i}")
            a(f"v_lshl_or_b32 v{o}, v{u}, 10, v{o}")
            a(f"v_lshl_or_b32 v{i}, v{t}, 19, v{i}")
            a(f"ds_add_u32 v{o}, v3 offset:{HS(s)}")
    def prefix(s):
        C, R = S, S + 4
        a(f"v_and_b32 v{X}, 0x3f0, v1")
        a(f"ds_read_b128 v[{C}:{C+3}], v1 offset:{HS(s)}")
        for r in range(3):
            a(f"ds_read_b128 v[{R+4*r}:{R+4*r+3}], v{X} offset:{HS(s)+1024*r}")
        a(f"v_mov_b32 v{X+3}, 0")
        if s == 0: a(f"ds_read_b32 v{TMP}, v{X+3} offset:{MISC+8}")
        for r in range(3):
            a(f"s_cmp_gt_u32 s33, {r}")
            a(f"s_cselect_b32 s{37+r}, -1, 0")
        a("s_waitcnt lgkmcnt(0)")
        for i in range(16): a(f"v_add_u32 v{C+i}, 1, v{C+i}")
        for i in range(16): a(f"v_lshrrev_b32 v{C+i}, 1, v{C+i}")
        for r in range(3):
            a(f"v_add3_u32 v{R+4*r}, v{R+4*r}, v{R+4*r+1}, v{R+4*r+2}")
            a(f"v_add_u32 v{R+4*r}, v{R+4*r}, v{R+4*r+3}")
            a(f"v_and_b32 v{R+4*r}, s{37+r}, v{R+4*r}")
        a(f"v_add3_u32 v{X+1}, v{R}, v{R+4}, v{R+8}")
        E_ = R
        a(f"v_mov_b32 v{E_}, v{C}")
        for i in range(1, 4): a(f"v_add_u32 v{E_+i}, v{E_+i-1}, v{C+i}")
        a(f"v_lshl_or_b32 v{X+1}, v{X+1}, 16, v{E_+3}")
        wave_scan(a, X + 1)
        a(f"v_readlane_b32 s38, v{X+1}, 63")
        a(f"v_and_b32 v{X+1}, 0xffff, v{X+1}")
        a(f"v_sub_u32 v{X+1}, v{X+1}, v{E_+3}")
        a("s_lshr_b32 s38, s38, 16")
        a(f"v_add_u32 v{X+1}, s38, v{X+1}")
        for i in range(4): a(f"v_add_u32 v{E_+i}, v{E_+i}, v{X+1}")
        for i in range(4): a(f"v_mul_u32_u24 v{E_+4+i}, 12, v{E_+i}")
        for i in range(4): a(f"ds_write_b32 v{E_+4+i}, v{X+3} offset:{R0-4}")
        for i in range(4): a(f"v_sub_u32 v{E_+i}, v{E_+i}, v{C+i}")
        for i in range(4): a(f"v_mad_u32_u24 v{E_+8+i}, v{E_+i}, 12, 2")
        a(f"ds_write_b128 v1, v[{E_+8}:{E_+11}] offset:{CUR}")
        a(f"v_add_u32 v{E_+7}, 127, v{E_+7}")
        a(f"v_and_b32 v{E_+7}, -128, v{E_+7}")
        a("v_cmpx_eq_u32 vcc, 255, v0")
        a(f"ds_write_b32 v{X+3}, v{E_+7} offset:{MISC+4*s}")
        a("s_mov_b64 exec, -1")
        a("s_waitcnt lgkmcnt(0)")
        a("s_barrier")
        for i in range(4): a(f"v_lshl_or_b32 v{C+i}, v{C+i}, 16, v{E_+i}")
        a("s_and_b32 s38, s33, 1")
        a("s_lshl_b32 s38, s38, 3")
        a("s_and_b32 s39, s33, 2")
        a("s_lshl_b32 s39, s39, 1")
        a("s_add_u32 s38, s38, s39")
        a(f"s_add_u32 s38, s38, {TSTG}")
        a(f"v_lshl_add_u32 v{X}, v{X}, 3, s38")
        for i in range(4): a(f"ds_write_b32 v{X}, v{C+i} offset:{i*32+s*16}")
        if s == 0:
            a("s_lshl_b32 s39, s2, 2")
            a(f"s_add_u32 s39, s39, {MAXOFF}")
            a(f"buffer_store_dword v{TMP}, v{X+3}, s[28:31], s39 offen")
    def cosines(s, lo, hi):
        for p in range(lo, hi):
            t, u, r = TMP + (p & 1) * 2, TMP + 1 + (p & 1) * 2, vA(s, p)
            a(f"v_lshlrev_b32 v{t}, 16, v{r}")
            a(f"v_and_b32 v{u}, 0xffff0000, v{r}")
            for x in (t, u): a(f"v_mul_f32 v{x}, 0.15915494, v{x}")
            for x in (t, u): a(f"v_fract_f32 v{x}, v{x}")
            for x in (t, u): a(f"v_cos_f32 v{x}, v{x}")
            a(f"v_cvt_pknorm_i16_f32 v{r}, v{t}, v{u}")
    def phaseB(s, work):
        a("s_waitcnt lgkmcnt(0)")
        ps()
        a("s_barrier")
        ps()
        a("s_cmp_ge_u32 s33, 4")
        a(f"s_cbranch_scc1 Lp_skipB{s}")
        a("s_setprio 3")
        prefix(s)
        a("s_setprio 0")
        a(f"Lp_skipB{s}:")
        for f in work: f()
        a("s_cmp_lt_u32 s33, 4")
        a(f"s_cbranch_scc1 Lp_skipBB{s}")
        a("s_barrier")
        a(f"Lp_skipBB{s}:")
        ps()
    def keys(s, fill):
        a("v_mov_b32 v3, 6")
        a(f"v_mov_b32 v{X}, 0")
        a(f"ds_read_b32 v{X}, v{X} offset:{MISC+4*s}")
        def atom(g):
            for j in range(4*g, 4*g + 4):
                a(f"ds_add_rtn_u32 v{vO(s,j)}, v{vO(s,j)}, v3 offset:{CUR}")
        atom(0)
        for g in range(5):
            if g < 4: atom(g + 1)
            w = (4 if g < 4 else 0) + (4 if g > 0 else 0)
            for f in fill[g]: f()
            a(f"s_waitcnt lgkmcnt({w})")
            for j in range(4*g, 4*g + 4):
                o, t, u = vO(s, j), TMP + (j & 1) * 2, TMP + 1 + (j & 1) * 2
                a(f"v_and_b32 v{t}, -4, v{o}")
                a(f"v_and_b32 v{u}, 2, v{o}")
                a(f"ds_write_b32 v{t}, v{vI(s,j)} offset:{R0}")
                a(f"v_lshl_add_u32 v{o}, v{u}, 1, v{o}")
        a(f"v_readfirstlane_b32 s{(26, 54)[s]}, v{X}")
    def cwrites(s, fill):
        for g in range(5):
            for f in fill[g]: f()
            vm.wait(("A", s, g))
            cosines(s, 2 * g, 2 * g + 2)
            for j in range(4*g, 4*g + 4):
                hi = "_d16_hi" if j & 1 else ""
                a(f"ds_write_b16{hi} v{vO(s,j)}, v{vA(s,j//2)} offset:{R0-2}")
        a(f"v_add_u32 v{X}, 0x10000, v1")
        a("s_waitcnt lgkmcnt(0)")
        ps()
        a("s_barrier")
        ps()
        for i in range(8):
            off = R0 + i * 16000
            r, off = ("v1", off) if off < 65536 else (f"v{X}", off - 65536)
            a(f"ds_read_b128 v[{vO(s,4*i)}:{vO(s,4*i)+3}], {r} offset:{off}")
    def st(s, i):
        d = (24, 52)[s]
        a(f"s_mov_b32 s40, {i*16000}")
        vm.issue(("S", s, i), f"buffer_store_dwordx4 v[{vO(s,4*i)}:{vO(s,4*i)+3}], v1, s[{d}:{d+3}], s40 offen{c.st}")
    ST = lambda s, i: (lambda: st(s, i))

    for g in range(5):
        ld("A", 0, g)
        hist(0, g)
    ld("O", 1, 0); ld("I", 1, 0)
    phaseB(0, [L("O", 1, 1)])
    keys(0, [[], [L("I", 1, 1)], [], [L("O", 1, 2)], [L("I", 1, 2)]])
    cwrites(0, [[], [L("O", 1, 3)], [], [L("I", 1, 3)], [L("O", 1, 4)]])
    ld("I", 1, 4); hist(1, 0)
    ld("A", 1, 0); hist(1, 1)
    ld("A", 1, 1); hist(1, 2)
    ld("A", 1, 2); hist(1, 3)
    ld("A", 1, 3); hist(1, 4)
    ld("A", 1, 4)
    k0 = 3 if "mid" in EXP else (0 if "late" in EXP else 5)
    phaseB(1, [])
    keys(1, [[ST(0, g - (5 - k0))] if g >= 5 - k0 else [] for g in range(5)])
    cwrites(1, [[ST(0, k0 + g // 2)] if g % 2 == 0 and "late" not in EXP else [] for g in range(5)])
    for i in range(0 if "late" in EXP else k0 + 3, 8): st(0, i)
    a(f"v_add_u32 v{X+1}, {TSTG}, v1")
    a(f"ds_read_b128 v[{S}:{S+3}], v{X+1}")
    for i in range(8):
        a(f"s_waitcnt lgkmcnt({8-i})")
        st(1, i)
    if "pstamp" in EXP:
        ps()
        a("s_waitcnt vmcnt(0)")
        ps()
        a("s_memrealtime s[96:97]")
        a("s_waitcnt lgkmcnt(0)")
        a("s_mov_b64 exec, -1")
        a("v_mov_b32 v4, 0")
        for k in range(1, pst[0]): a(f"v_writelane_b32 v4, s{64+k}, {k-1}")
        a("v_writelane_b32 v4, s64, 62")
        a("v_writelane_b32 v4, s96, 63")
        srd(a, 12, 10, 11, WS_BYTES)
        a("s_lshl_b32 s40, s2, 12")
        a(f"s_add_u32 s40, s40, {STAMP_OFF}")
        a("v_lshlrev_b32 v5, 2, v0")
        a("buffer_store_dword v4, v5, s[12:15], s40 offen")
    a("s_cmp_ge_u32 s33, 8")
    a("s_cbranch_scc1 Lp_end")
    a("s_lshl_b32 s39, s2, 13")
    a("s_waitcnt lgkmcnt(0)")
    a(f"buffer_store_dwordx4 v[{S}:{S+3}], v1, s[28:31], s39 offen")
    a("Lp_end:")
    a("s_endpgm")
    return 128, 102

SL = 1280
HIST, BASE = 0, 5120
GA, GB = 10240, 10240 + 16 * SL
AC01, AC23 = GB + 8 * SL, GB + 16 * SL
BUF = GB + 24 * SL
NW, NBATCH = 5, 4
NWIN = NW * NBATCH + 2
SCRW = NWIN * 256
CLDS = BUF + 16 * SCRW
assert CLDS <= 163840
FLAG = HIST + 4 * 1270
AINIT = 0x40000000

def gen_C(a, c):
    NB = c.NB
    L0 = "l1" not in EXP
    vLane, vSA, vEight, vSticky, vTot, vNegM = 1, 2, 3, 4, 5, 6
    AD = lambda i: 8 + i
    vMagic = 20
    RAW = lambda w: 22 + 6 * w
    SRT = lambda i: 52 + 2 * i
    GAT = lambda i: 72 + 2 * (i % 5)
    XR = lambda i: 82 + 4 * (i % 2)
    PR = lambda i: 90 + 10 * (i % 2)
    TT = 110
    TM = 116
    PF = PR(1)
    vSA2 = 126
    sTot, sExc = 8, 9
    sG = 24
    sQ = 16
    sNext, sRem, sPass, sFirst, sLeft, sMx = 32, 33, 34, 35, 26, 27
    WM = lambda w: 36 + 2 * w
    GM = lambda i: 46 + 2 * (i % 5)
    SC = 56

    def proc_pre(vKey, vC, R):
        g, la, c01, c2, t = R, R + 6, R + 7, R + 8, R + 9
        a(f"v_lshrrev_b32 v{la}, 16, v{vKey}")
        a(f"v_fmaak_f32 v{c01}, v{vC}, v{vC}, {f32(-0.5/KAP/KAP)}")
        a(f"v_and_b32 v{la}, 0xfff8, v{la}")
        a(f"v_add_f32 v{c2}, {f32(-0.25/KAP/KAP)}, v{c01}")
        a(f"v_add_u32 v{t}, v{la}, v{la}")
        if "nog" in EXP:
            a("ds_nop"); a("ds_nop")
        else:
            a(f"ds_read_b64 v[{g+4}:{g+5}], v{la} offset:{GB}")
            a(f"ds_read_b128 v[{g}:{g+3}], v{t} offset:{GA}")
        a(f"v_mul_f32 v{c2}, v{c2}, v{vC}")
        a(f"v_cvt_pk_bf16_f32 v{c01}, v{vC}, v{c01}")
    def proc_s(vM, R):
        g, la, c01, c2 = R, R + 6, R + 7, R + 8
        a(f"v_lshlrev_b32 v{TT}, 16, v{g+4}")
        a(f"v_mul_f32 v{TT+1}, v{g+4}, v{c2}")
        a(f"v_lshlrev_b32 v{TT+2}, 16, v{g+5}")
        a(f"v_mul_f32 v{TT+3}, v{g+5}, v{c2}")
        a(f"v_mul_f32 v{TT}, v{TT}, v{c2}")
        a(f"v_mul_f32 v{TT+2}, v{TT+2}, v{c2}")
        for d in (1, 3, 0, 2):
            a(f"v_dot2c_f32_bf16 v{TT+d}, v{g+d}, v{c01}")
        a(f"v_lshlrev_b32 v{TT+4}, 16, v{vM}")
        a(f"v_lshlrev_b32 v{TT+5}, 16, v{vM+1}")
    mdreg = lambda vM, d: (TT + 4, vM, TT + 5, vM + 1)[d]
    def sticky(X):
        a(f"v_bitop3_b32 v{vSticky}, v{vSticky}, v{X}, v{X+1} bitop3:0xfe")
        a(f"v_bitop3_b32 v{vSticky}, v{vSticky}, v{X+2}, v{X+3} bitop3:0xfe")
    def proc_post(vM, R, X):
        la = R + 6
        proc_s(vM, R)
        for d in (1, 3, 0, 2):
            a(f"v_fma_f32 v{X+d}, v{mdreg(vM, d)}, v{TT+d}, v{vMagic}")
        a(f"v_lshl_add_u64 v[{X}:{X+1}], v[{X}:{X+1}], 0, v[{vNegM}:{vNegM+1}]")
        a(f"v_lshl_add_u64 v[{X+2}:{X+3}], v[{X+2}:{X+3}], 0, v[{vNegM}:{vNegM+1}]")
        if "noatom" in EXP:
            a("ds_nop"); a("ds_nop")
            for d in range(4): a(f"v_mov_b32 v{X+d}, 0")
        else:
            a(f"ds_add_rtn_u64 v[{X}:{X+1}], v{la}, v[{X}:{X+1}] offset:{AC01}")
            a(f"ds_add_rtn_u64 v[{X+2}:{X+3}], v{la}, v[{X+2}:{X+3}] offset:{AC23}")
    def table_load(vD, vP, t):
        a("s_lshl_b32 s4, s6, 5")
        a(f"v_and_or_b32 v{t}, v{vLane}, 31, s4")
        a(f"v_lshrrev_b32 v{t+1}, 1, v{t}")
        a(f"v_lshlrev_b32 v{t+1}, 13, v{t+1}")
        a(f"v_lshlrev_b32 v{t+2}, 4, v{t}")
        a(f"v_and_or_b32 v{t+1}, v{t+2}, 16, v{t+1}")
        a(f"v_lshrrev_b32 v{t+2}, 2, v{vLane}")
        a(f"v_and_or_b32 v{t+1}, v{t+2}, 8, v{t+1}")
        a("s_lshl_b32 s4, s3, 3")
        a(f"buffer_load_dwordx2 v[{vP}:{vP+1}], v{t+1}, s[20:23], s4 offen")
        a(f"v_mul_u32_u24 v{vD}, {c.CS}, v{t}")
    def table_scan(vD, vP, vN, add):
        for i in range(2):
            a(f"v_and_b32 v{vN+2+i}, 0xffff, v{vP+i}")
            a(f"v_lshrrev_b32 v{vN+i}, 16, v{vP+i}")
            a(f"v_mov_b32 v{vP+i}, v{vN+i}")
        wave_scan(a, [vP, vP + 1])
        a(f"v_readlane_b32 s{sTot}, v{vP}, 63")
        a(f"v_add_u32 v{vD}, {add & 0xffffffff}, v{vD}")
        for i in range(2): a(f"v_add_u32 v{vN+2+i}, v{vN+2+i}, v{vN+i}")
        a(f"v_add_u32 v{vP+1}, s{sTot}, v{vP+1}")
        for i in range(2): a(f"v_sub_u32 v{vN+2+i}, v{vN+2+i}, v{vP+i}")
        a(f"v_readlane_b32 s{sTot}, v{vP+1}, 63")
        a(f"v_mad_i32_i24 v{vD+1}, v{vN+3}, 12, v{vD}")
        a(f"v_mad_i32_i24 v{vD}, v{vN+2}, 12, v{vD}")

    a("c_kernel:")
    a("s_cmp_ge_u32 s2, 256")
    a("s_cbranch_scc1 Lc_end")
    if "stamp" in EXP:
        a("s_mov_b32 m0, 0")
        a("v_mov_b32 v127, 0")
    rstamp(a, 62)
    stamp(a)
    a("s_setprio 3")
    a("s_load_dwordx2 s[10:11], s[0:1], 104")
    a("s_load_dwordx2 s[64:65], s[0:1], 0")
    a("s_load_dwordx4 s[68:71], s[0:1], 80")
    a("s_and_b32 s3, s2, 7")
    a("s_lshl_b32 s3, s3, 5")
    a("s_lshr_b32 s4, s2, 3")
    a("s_or_b32 s3, s3, s4")
    a("s_lshl_b32 s3, s3, 2")
    Q = 108
    vD, vP, vN = Q + 2, Q + 4, Q + 6
    vDi, vMx, T2, Z = 90, 92, 96, 98
    RB = lambda h: XR(0) + 4 * h
    ST1 = lambda w: 104 + 4 * w
    CAP = NW * 64
    a(f"v_lshrrev_b32 v{Q}, 6, v0")
    a(f"v_and_b32 v{vLane}, 63, v0")
    a(f"v_readfirstlane_b32 s6, v{Q}")
    a(f"v_mov_b32 v{Z+8}, 0")
    a(f"v_mov_b32 v{Z+9}, 0")
    a(f"v_lshlrev_b32 v{Q}, 3, v0")
    a(f"ds_write_b64 v{Q}, v[{Z+8}:{Z+9}] offset:{HIST}")
    a(f"s_mul_i32 s7, s6, {SCRW}")
    a(f"s_add_u32 s7, s7, {BUF}")
    a(f"v_lshl_add_u32 v{Q}, v{vLane}, 4, s7")
    for i in range(4): a(f"v_mov_b32 v{Z+i}, 12")
    a("s_waitcnt lgkmcnt(0)")
    srd(a, 20, 10, 11, WS_BYTES)
    table_load(vD, vP, vN)
    a("s_barrier")
    for i in range(NWIN // 4):
        a(f"ds_write_b128 v{Q}, v[{Z}:{Z+3}] offset:{1024*i}")
    a(f"v_lshl_add_u32 v{Q+1}, v{vLane}, 2, s7")
    for i in range(NWIN // 4 * 4, NWIN):
        a(f"ds_write_b32 v{Q+1}, v{Z} offset:{256*i}")
    srd(a, 12, 10, 11, 4 * 131072, stride=8, off=MDOFF)
    a(f"v_add_u32 v{vD}, {(RECOFF - MARK) & 0xffffffff}, v{vD}")
    a(f"v_lshrrev_b32 v{Q}, 5, v{vLane}")
    a(f"v_mul_u32_u24 v{Q}, {CAP}, v{Q}")
    a(f"s_movk_i32 s4, {CAP}")
    if 'stamp2' in EXP: stamp(a)
    a("s_waitcnt vmcnt(0)")
    if 'stamp2' in EXP: stamp(a)
    vS, vT = vN, vN + 2
    for i in range(2):
        a(f"v_and_b32 v{vT+i}, 0xffff, v{vP+i}")
        a(f"v_lshrrev_b32 v{vS+i}, 16, v{vP+i}")
        a(f"v_mov_b32 v{vP+i}, v{vS+i}")
    wave_scan(a, [vP, vP + 1], halves=True)
    for i in range(2): a(f"v_sub_u32 v{vS+i}, v{vP+i}, v{vS+i}")
    for q in range(4): a(f"v_readlane_b32 s{sQ+q}, v{vP+q//2}, {31+32*(q&1)}")
    for i in range(2): a(f"v_sub_u32 v{vT+i}, v{vT+i}, v{vS+i}")
    a(f"v_mad_i32_i24 v{vD+1}, v{vT+1}, 12, v{vD}")
    a(f"v_mad_i32_i24 v{vD}, v{vT}, 12, v{vD}")
    for i in range(2):
        if i: a(f"v_add_u32 v{Q}, {2*CAP}, v{Q}")
        a(f"v_min_u32 v{vT}, s4, v{vS+i}")
        a(f"v_min_u32 v{vT+1}, s4, v{vP+i}")
        a(f"v_mad_i32_i24 v{vT+2}, v{Q}, -12, v{vD+i}")
        a(f"v_add_u32 v{vT}, v{vT}, v{Q}")
        a(f"v_add_u32 v{vT+1}, v{vT+1}, v{Q}")
        a(f"v_lshl_add_u32 v{vT}, v{vT}, 2, s7")
        a(f"v_lshl_add_u32 v{vT+1}, v{vT+1}, 2, s7")
        a(f"ds_add_u32 v{vT}, v{vT+2}")
        a(f"ds_sub_u32 v{vT+1}, v{vT+2}")
    WA = [GAT(0) + i for i in range(10)] + [AD(i) for i in range(12)]
    for i in range(2 * NW):
        a(f"ds_read_b32 v{WA[i]}, v{Q+1} offset:{256*i}")
    a(f"s_mov_b32 s5, {MARK-12:#x}")
    def addr_scan(regs):
        wave_scan(a, regs)
        for k, v in enumerate(regs): a(f"v_readlane_b32 s{SC+k}, v{v}, 63")
        for k, v in enumerate(regs):
            a(f"v_add_u32 v{v}, s5, v{v}")
            a(f"s_add_u32 s5, s5, s{SC+k}")
    def raw_load(w, va, dst=None):
        dst = RAW(w) if dst is None else dst
        a(f"buffer_load_dwordx3 v[{dst}:{dst+2}], v{va}, s[20:23], 0 offen{c.rec}")
    a(f"s_waitcnt lgkmcnt({NW})")
    if 'stamp2' in EXP: stamp(a)
    addr_scan(WA[0:5])
    for w in range(NW): raw_load(w, WA[w])
    a("s_setprio 1")
    stamp(a)
    a(f"s_movk_i32 s{sExc}, {(NBATCH-1)*CAP}")
    a(f"s_movk_i32 s8, {NWIN*64}")
    for i in range(2):
        for hq in range(2):
            q = 2 * i + hq
            a(f"s_mov_b32 s{SC+hq}, s{sExc}")
            a(f"s_sub_u32 s{SC+2}, s{sQ+q}, s4")
            a(f"s_max_i32 s{SC+2}, s{SC+2}, 0")
            a(f"s_add_u32 s{sExc}, s{sExc}, s{SC+2}")
            a(f"s_min_u32 s{sQ+q}, s{sQ+q}, s4")
        a(f"v_mov_b32 v{Q}, s{SC}")
        a("s_mov_b32 exec_lo, 0")
        a(f"v_mov_b32 v{Q}, s{SC+1}")
        a("s_mov_b32 exec_lo, -1")
        a(f"v_max_u32 v{vT}, s4, v{vS+i}")
        a(f"v_mad_i32_i24 v{vT+2}, v{Q}, -12, v{vD+i}")
        a(f"v_add_u32 v{vT}, v{vT}, v{Q}")
        a(f"v_add_u32 v{vT+1}, v{vP+i}, v{Q}")
        a(f"v_lshl_add_u32 v{vT+3}, v{vT}, 2, s7")
        a(f"v_lshl_add_u32 v{vT+4}, v{vT+1}, 2, s7")
        a(f"v_cmpx_lt_u32 vcc, s4, v{vP+i}")
        a(f"v_cmpx_gt_u32 vcc, s8, v{vT}")
        a(f"ds_add_u32 v{vT+3}, v{vT+2}")
        a(f"v_cmpx_gt_u32 vcc, s8, v{vT+1}")
        a(f"ds_sub_u32 v{vT+4}, v{vT+2}")
        a("s_mov_b64 exec, -1")
    a(f"s_sub_u32 s{sExc}, s{sExc}, {(NBATCH-1)*CAP}")
    for i in range(2 * NW, NWIN):
        a(f"ds_read_b32 v{WA[i]}, v{Q+1} offset:{256*i}")
    for i in range(4): a(f"v_mov_b32 v{Z+4+i}, {AINIT:#x}")
    a(f"v_lshlrev_b32 v{Q}, 4, v0")
    a(f"ds_write_b128 v{Q}, v[{Z+4}:{Z+7}] offset:{AC01}")
    a(f"v_lshlrev_b32 v{Q}, 2, v0")
    a(f"ds_write_b32 v{Q}, v{Z+4} offset:{AC01+16384}")
    a(f"s_mul_i32 s4, s6, {512 if L0 else NW*128*8}")
    a(f"s_add_u32 s4, s4, {BUF}")
    a(f"v_lshl_add_u32 v{vSA}, v{vLane}, 3, s4")
    a(f"v_add_u32 v{vSA2}, 0x10000, v{vSA}")
    a(f"v_mov_b32 v{vEight}, 8")
    a(f"v_mov_b32 v{vSticky}, 0")
    a("s_waitcnt lgkmcnt(0)")
    addr_scan(WA[5:10])
    a("s_load_dwordx8 s[72:79], s[68:69], 0")
    def next_q():
        a(f"s_mov_b32 s{sLeft}, s{sQ}")
        for q in range(3): a(f"s_mov_b32 s{sQ+q}, s{sQ+q+1}")
        a(f"s_mov_b32 s{sQ+3}, 0")
    def g_load():
        a(f"s_mul_i32 s{sG}, s3, {GSTR//4}")
        a(f"s_add_u32 s{sG}, s{sG}, {GOFF}")
        a(f"v_lshlrev_b32 v{T2}, 4, v0")
        if "stamp" in EXP: a("s_mov_b32 s7, m0")
        a("s_lshl_b32 s4, s6, 10")
        a(f"s_add_u32 m0, s4, {GA}")
        a(f"buffer_load_dwordx4 v{T2}, s[20:23], s{sG} offen lds")
        a("s_cmp_ge_u32 s6, 14")
        a("s_cbranch_scc1 Lc_g2skip")
        a(f"s_add_u32 m0, s4, {GA+16384}")
        a(f"s_add_u32 s4, s{sG}, 16384")
        a(f"buffer_load_dwordx4 v{T2}, s[20:23], s4 offen lds")
        a("Lc_g2skip:")
        if "stamp" in EXP: a("s_mov_b32 m0, s7")
        a(f"v_lshlrev_b32 v{T2}, 4, v{vLane}")
        a(f"s_mov_b32 s4, {MAXOFF}")
        a(f"buffer_load_dwordx4 v[{vMx}:{vMx+3}], v{T2}, s[20:23], s4 offen")
    def magic():
        a(f"v_max3_u32 v{vMx}, v{vMx}, v{vMx+1}, v{vMx+2}")
        a(f"v_max_u32 v{vMx}, v{vMx}, v{vMx+3}")
        wave_scan(a, vMx, "v_max_u32")
        a(f"v_readlane_b32 s{sMx}, v{vMx}, 63")
        a(f"s_lshr_b32 s{sMx}, s{sMx}, 23")
        a(f"s_add_u32 s{sMx}, s{sMx}, 2")
        a(f"s_min_u32 s{sMx}, s{sMx}, 254")
        a(f"s_lshl_b32 s4, s{sMx}, 23")
        a("s_or_b32 s4, s4, 0x400000")
        a(f"v_mov_b32 v{vMagic}, s4")
        a(f"v_sub_u32 v{vNegM}, 0, v{vMagic}")
        a(f"v_not_b32 v{vNegM+1}, v{vMagic}")
        a(f"s_sub_u32 s{sMx}, s{sMx}, 150")

    def binaddr(dst, key):
        a(f"v_lshrrev_b32 v{dst}, 4, v{key}")
        a(f"v_and_b32 v{dst}, 0x1ffc, v{dst}")
    def hist(w):
        r = RAW(w)
        binaddr(r + 4, r); binaddr(r + 5, r + 2)
        a(f"v_cmpx_gt_i32_e64 s[{WM(w)}:{WM(w)+1}], s{sLeft}, v{vLane}")
        a(f"ds_add_rtn_u32 v{r+4}, v{r+4}, v{vEight} offset:{HIST}")
        a(f"ds_add_rtn_u32 v{r+5}, v{r+5}, v{vEight} offset:{HIST}")
        a("s_mov_b64 exec, -1")
        a(f"s_sub_u32 s{sLeft}, s{sLeft}, 64")
    def cvt_c(r):
        a(f"v_cvt_f32_i32_sdwa v{r+3}, sext(v{r+1}) dst_sel:DWORD dst_unused:UNUSED_PAD src0_sel:WORD_1")
        a(f"v_cvt_f32_i32_sdwa v{r+1}, sext(v{r+1}) dst_sel:DWORD dst_unused:UNUSED_PAD src0_sel:WORD_0")
    def base_read(w, t=TM):
        r = RAW(w)
        binaddr(t, r); binaddr(t + 1, r + 2)
        a(f"ds_read_b32 v{t}, v{t} offset:{BASE}")
        a(f"ds_read_b32 v{t+1}, v{t+1} offset:{BASE}")
        cvt_c(r)
    def scatter(w, t=TM):
        r = RAW(w)
        a(f"v_sub_u32 v{r+4}, v{t}, v{r+4}")
        a(f"v_sub_u32 v{r+5}, v{t+1}, v{r+5}")
        a(f"s_mov_b64 exec, s[{WM(w)}:{WM(w)+1}]")
        a(f"ds_write_b64 v{r+4}, v[{r}:{r+1}]")
        a(f"ds_write_b64 v{r+5}, v[{r+2}:{r+3}]")
        a("s_mov_b64 exec, -1")
    def prefix(Cn):
        X = Cn + 20
        a(f"v_mul_u32_u24 v{X}, 80, v{vLane}")
        for i in range(0, 20, 4):
            a(f"ds_read_b128 v[{Cn+i}:{Cn+i+3}], v{X} offset:{HIST+4*i}")
        for i in range(4): a(f"v_mov_b32 v{X+2+i}, 0")
        a("s_waitcnt lgkmcnt(0)")
        a(f"v_writelane_b32 v{Cn}, 0, 0")
        for i in range(1, 20):
            a(f"v_add_u32 v{Cn+i}, v{Cn+i}, v{Cn+i-1}")
        a(f"v_mov_b32 v{X+1}, v{Cn+19}")
        wave_scan(a, X + 1)
        a(f"v_sub_u32 v{X+1}, v{X+1}, v{Cn+19}")
        a(f"v_add_u32 v{X+1}, {BUF-8}, v{X+1}")
        for i in range(20):
            a(f"v_add_u32 v{Cn+i}, v{Cn+i}, v{X+1}")
        a(f"s_mov_b32 s4, {MARK:#x}")
        a(f"v_writelane_b32 v{Cn}, s4, 0")
        for i in range(0, 20, 4):
            a(f"ds_write_b128 v{X}, v[{Cn+i}:{Cn+i+3}] offset:{BASE+4*i}")
        for i in range(0, 20, 4):
            a(f"ds_write_b128 v{X}, v[{X+2}:{X+5}] offset:{HIST+4*i}")
        a("s_waitcnt lgkmcnt(5)")
    def total_read():
        a(f"ds_read_b32 v{vTot}, v{vEight} offset:{BASE+4*1279-8}")
    def total_take():
        a(f"v_readfirstlane_b32 s{sNext}, v{vTot}")
        a(f"s_sub_u32 s{sNext}, s{sNext}, {BUF-8}")
        a(f"s_lshr_b32 s{sNext}, s{sNext}, 3")
        a(f"s_mul_i32 s4, s6, {64 if L0 else NW*128}")
        a(f"s_sub_u32 s{sNext}, s{sNext}, s4")
    def slot_read(i):
        if L0: a(f"ds_read_b64 v[{SRT(i)}:{SRT(i)+1}], v{vSA if i < 8 else vSA2} offset:{8192*(i%8)}")
        else: a(f"ds_read_b64 v[{SRT(i)}:{SRT(i)+1}], v{vSA} offset:{512*i}")
    def gather(i):
        a(f"v_and_b32 v{GAT(i)}, 0x7ffff, v{SRT(i)}")
        if "nogather" in EXP: a(f"v_mov_b32 v{GAT(i)}, {BIAS}")
        a(f"v_cmpx_gt_i32_e64 s[{GM(i)}:{GM(i)+1}], s{sRem}, v{vLane}")
        a(f"buffer_load_dwordx2 v[{GAT(i)}:{GAT(i)+1}], v{GAT(i)}, s[12:15], 0 idxen")
        a("s_mov_b64 exec, -1")
        a(f"s_sub_u32 s{sRem}, s{sRem}, {1024 if L0 else 64}")
    def pre(i): proc_pre(SRT(i), SRT(i) + 1, PR(i))
    def post(i, vm, lg):
        a(f"s_waitcnt vmcnt({vm}) lgkmcnt({lg})")
        sticky(XR(i))
        a(f"s_mov_b64 exec, s[{GM(i)}:{GM(i)+1}]")
        proc_post(GAT(i), PR(i), XR(i))
        a("s_mov_b64 exec, -1")
    def prio(p):
        if "noprio" not in EXP: a(f"s_setprio {p}")
    PW = 15
    prio(2)
    next_q()
    for w in range(NW):
        a(f"s_waitcnt vmcnt({NW-1-w})")
        hist(w)
    a("s_waitcnt lgkmcnt(0)")
    stamp(a)
    a("s_barrier")
    stamp(a)
    a(f"s_cmp_lg_u32 s6, {PW}")
    a("s_cbranch_scc1 Lc_pfx0")
    prio(3)
    prefix(PF)
    a("s_barrier")
    a("s_waitcnt lgkmcnt(0)")
    a("Lc_pfx0:")
    raw_load(0, WA[5], ST1(0))
    a(f"s_cmp_eq_u32 s6, {PW}")
    a("s_cbranch_scc1 Lc_pfx1")
    a("s_barrier")
    a("Lc_pfx1:")
    stamp(a)
    total_read()
    for w in range(NW): base_read(w, SRT(w))
    for w in range(NW):
        a(f"s_waitcnt lgkmcnt({2*(NW-1)})")
        scatter(w, SRT(w))
        if w < 4: raw_load(w + 1, WA[6 + w], ST1(w + 1))
    total_take()
    a(f"s_mov_b32 s{sPass}, {NBATCH}")
    a(f"s_mov_b32 s{sFirst}, 1")
    a("s_waitcnt lgkmcnt(0)")
    real = a.lines
    sc = Sched(a)
    def Pre(i): pre(i); sc.ds(("G", i), 2)
    def Slot(i): slot_read(i); sc.ds(("S", i))
    def Gather(i): sc.need(l=[("S", i)]); gather(i); sc.vm(("g", i))
    def PreS(i): sc.need(l=[("S", i)]); Pre(i)
    def Post(i, tag=None, also=()):
        t = i if tag is None else tag
        sc.need(v=[("g", t)] + list(also), l=[("G", t), ("A", i % 2)])
        sticky(XR(i))
        a(f"s_mov_b64 exec, s[{GM(i)}:{GM(i)+1}]")
        proc_post(GAT(i), PR(i), XR(i))
        a("s_mov_b64 exec, -1")
        sc.ds(("A", i % 2), 2)
    def Hist(w): sc.need(v=[("R", w)]); hist(w); sc.ds(("H", w), 2)
    def Base(w, t=TM): base_read(w, t); sc.ds(("B", w), 2)
    def Scat(w, t=TM): sc.need(l=[("B", w)]); scatter(w, t); sc.ds(("W", w), 2)
    def Raw(w, mask=None):
        if mask is not None: a(f"s_mov_b64 exec, s[{mask}:{mask+1}]")
        raw_load(w, AD(w)); sc.vm(("R", w))
        if mask is not None: a("s_mov_b64 exec, -1")
    def scan_next(lbl):
        a(f"s_cmp_eq_u32 s{sPass}, 0")
        a(f"s_cbranch_scc1 {lbl}")
        addr_scan([AD(i) for i in range(5)])
        a(f"{lbl}:")
    def body():
        a("Lc_loop:")
        stamp(a)
        a(f"s_sub_u32 s{sPass}, s{sPass}, 1")
        a(f"s_cmp_lt_i32 s{sPass}, 0")
        a("s_cbranch_scc1 Lc_tail")
        body.tail = sc.copy(a)
        a("s_barrier")
        stamp(a)
        prio(2)
        a(f"s_mov_b32 s{sRem}, s{sNext}")
        for i in range(7): Slot(i)
        a(f"s_cmp_eq_u32 s{sFirst}, 1")
        a("s_cbranch_scc1 Lc_first")
        Gather(0)
        a(f"s_cmp_lg_u32 s6, {PW}")
        a("s_cbranch_scc1 Lc_nopfx")
        a(f"s_cmp_eq_u32 s{sPass}, 0")
        a("s_cbranch_scc1 Lc_nopfx")
        prio(3)
        prefix(PF)
        a("Lc_nopfx:")
        Pre(7); Slot(7)
        Post(6); Gather(1)
        lprio(1)
        Pre(8); Slot(8)
        Post(7); Gather(2)
        lprio(0)
        Pre(9); Slot(9)
        scan_next("Lc_noscan")
        Post(8); Gather(3)
        sc.need(l=[("S", 9)])
        a("Lc_joined:")
        stamp(a)
        a("s_barrier")
        stamp(a)
        prio(3)
        total_read(); sc.ds("T")
        Base(0)
        Pre(0)
        Post(9); Gather(4)
        sc.need(l=["T"]); total_take()
        Scat(0); Raw(0); Base(1)
        Pre(1)
        Scat(1); Raw(1); Base(2)
        Post(0); Gather(5)
        Scat(2); Raw(2); Base(3)
        prio(2)
        Pre(2)
        Scat(3); Raw(3); Base(4)
        Post(1); Gather(6)
        Scat(4); Raw(4)
        a(f"s_cmp_lt_u32 s{sPass}, 2")
        a("s_cbranch_scc1 Lc_noshift")
        for i in range(7): a(f"v_mov_b32 v{AD(i)}, v{AD(i+5)}")
        for i in range(7, 10): a(f"v_mov_b32 v{AD(i)}, 0")
        a("Lc_noshift:")
        Pre(3)
        Post(2); Gather(7)
        prio(1)
        Pre(4)
        Post(3); Gather(8)
        next_q(); Hist(0); Hist(1)
        Pre(5)
        Post(4); Gather(9)
        prio(0)
        Hist(2); Hist(3)
        Pre(6)
        Hist(4)
        Post(5)
        a(f"s_mov_b32 s{sFirst}, 0")
        sc.need(l=[("H", 4)])
        a("s_branch Lc_loop")
    def lprio(p):
        if "noprio" in EXP: return
        lbl = a.label("c_lp")
        a(f"s_cmp_eq_u32 s6, {PW}")
        a(f"s_cbranch_scc1 {lbl}")
        a(f"s_setprio {p}")
        a(f"{lbl}:")
    a.lines = []
    body()
    a.lines = real
    body()
    a("Lc_first:")
    for i in range(7, 10): slot_read(i)
    a("s_waitcnt lgkmcnt(6)")
    gather(0)
    g_load()
    gather(1)
    next_q()
    for w in range(NW):
        a(f"s_waitcnt vmcnt({NW-1-w+4})")
        for i in range(3): a(f"v_mov_b32 v{RAW(w)+i}, v{ST1(w)+i}")
        hist(w)
    a("s_waitcnt lgkmcnt(0)")
    a("s_barrier")
    a(f"s_cmp_lg_u32 s6, {PW}")
    a("s_cbranch_scc1 Lc_first2")
    prio(3)
    prefix(PF)
    a("s_waitcnt lgkmcnt(0)")
    a("Lc_first2:")
    gather(2)
    addr_scan([AD(i) for i in range(5)])
    a("s_waitcnt vmcnt(2)")
    magic()
    gather(3)
    a(f"s_mov_b64 s[{GM(9)}:{GM(9)+1}], 0")
    for i in range(8): a(f"v_mov_b32 v{XR(0)+i}, 0")
    a("s_waitcnt lgkmcnt(0)")
    a("s_branch Lc_joined")

    sc = body.tail
    a("Lc_tail:")
    EP = AD(0)
    a(f"v_add_u32 v{TM}, 1024, v0")
    srd(a, 28, 64, 65, E * 8)
    a(f"v_lshlrev_b32 v{TM+1}, 3, v0")
    for h in range(2):
        e = EP + 6 * h
        edge_of_slot(a, 0 if h == 0 else TM, e + 4, e + 5)
        a(f"v_lshlrev_b32 v{e+4}, 3, v{e+4}")
        a(f"buffer_load_dwordx2 v[{e}:{e+1}], v{e+4}, s[28:31], 0 offen"); sc.vm("m")
        a(f"s_add_u32 s4, s{sG}, {24*1280 + 8192*h}")
        a(f"buffer_load_dwordx2 v[{e+2}:{e+3}], v{TM+1}, s[20:23], s4 offen"); sc.vm("m")
    Pre(7)
    Post(6)
    def xgather(r, k):
        sc.need(v=[("R", k)])
        cvt_c(r)
        for h in range(2):
            a(f"v_and_b32 v{GAT(h)}, 0x7ffff, v{r+2*h}")
            a(f"v_cmpx_ne_u32_e64 s[{GM(h)}:{GM(h)+1}], 0, v{r+2*h}")
            a(f"buffer_load_dwordx2 v[{GAT(h)}:{GAT(h)+1}], v{GAT(h)}, s[12:15], 0 idxen"); sc.vm(("g", "x", k, h))
            a("s_mov_b64 exec, -1")
    def XPre(r, k, h): proc_pre(r + 2 * h, r + 2 * h + 1, PR(h)); sc.ds(("G", "x", k, h), 2)
    def XPost(k, h):
        sc.need(v=[("g", "x", k, h)], l=[("G", "x", k, h), ("A", h)])
        sticky(XR(h))
        a(f"s_mov_b64 exec, s[{GM(h)}:{GM(h)+1}]")
        proc_post(GAT(h), PR(h), XR(h))
        a("s_mov_b64 exec, -1")
        sc.ds(("A", h), 2)
    srd(a, 28, 70, 71, E * 8)
    xgather(RAW(0), 0)
    Pre(8); Post(7)
    Pre(9); Post(8)
    XPre(RAW(0), 0, 0)
    Post(9)
    a(f"s_cmp_eq_u32 s{sExc}, 0")
    a("s_cbranch_scc1 Lc_nox")
    XPre(RAW(0), 0, 1)
    XPost(0, 0); XPost(0, 1)
    a(f"s_cmp_le_u32 s{sExc}, 64")
    a("s_cbranch_scc1 Lc_nox")
    xgather(RAW(1), 1)
    XPre(RAW(1), 1, 0); XPre(RAW(1), 1, 1)
    XPost(1, 0); XPost(1, 1)
    a("Lc_nox:")
    a("s_waitcnt vmcnt(0) lgkmcnt(0)")
    sticky(XR(0)); sticky(XR(1))
    a(f"v_cmp_gt_i32 vcc, 0, v{vSticky}")
    a(f"s_cmp_gt_u32 s{sExc}, 128")
    a("s_cselect_b32 s5, 1, 0")
    a("s_cmp_lg_u64 vcc, 0")
    a("s_cselect_b32 s4, 2, 0")
    a("s_or_b32 s4, s4, s5")
    a("s_cbranch_scc0 Lc_noflag")
    a(f"v_mov_b32 v{TM}, s4")
    a(f"ds_or_b32 v{vEight}, v{TM} offset:{FLAG-8}")
    a("s_waitcnt lgkmcnt(0)")
    a("Lc_noflag:")
    stamp(a)
    a("s_barrier")
    stamp(a)
    AC = SRT(0)
    a(f"ds_read_b32 v{TM}, v{vEight} offset:{FLAG-8}")
    a(f"v_lshlrev_b32 v{TM+1}, 3, v0")
    a(f"v_add_u32 v{TT}, 8192, v{TM+1}")
    for h in range(2):
        va = TT if h else TM + 1
        a(f"ds_read_b64 v[{AC+4*h}:{AC+4*h+1}], v{va} offset:{AC01}")
        a(f"ds_read_b64 v[{AC+4*h+2}:{AC+4*h+3}], v{va} offset:{AC23}")
    a("s_waitcnt lgkmcnt(0)")
    a(f"v_readfirstlane_b32 s7, v{TM}")
    for i in range(8):
        a(f"v_subrev_u32 v{AC+i}, {AINIT:#x}, v{AC+i}")
        a(f"v_cvt_f32_i32 v{AC+i}, v{AC+i}")
    a("s_cmp_lg_u32 s7, 0")
    a("s_cbranch_scc1 Lc_slow")
    a("Lc_fin:")
    UP, UN = SRT(6), SRT(8)
    def unpack(dst, src):
        for d in range(4):
            if d & 1: a(f"v_and_b32 v{dst+d}, 0xffff0000, v{src+d//2}")
            else: a(f"v_lshlrev_b32 v{dst+d}, 16, v{src+d//2}")
    def fin_slot(h):
        e, ac = EP + 6 * h, AC + 4 * h
        for d in range(4): a(f"v_ldexp_f32 v{ac+d}, v{ac+d}, s{sMx}")
        a(f"v_cvt_pk_bf16_f32 v{ac}, v{ac}, v{ac+1}")
        a(f"v_cvt_pk_bf16_f32 v{ac+1}, v{ac+2}, v{ac+3}")
        for i in range(2):
            for d in range(4):
                op = "s_pack_hh_b32_b16" if d & 1 else "s_pack_ll_b32_b16"
                a(f"{op} s4, s{72 + 4*i + d//2}, s{74 + 4*i + d//2}")
                a(f"v_dot2_f32_bf16 v{UP+d}, v{ac+i}, s4, {'0' if i == 0 else 'v%d' % (UP+d)}")
        unpack(UN, e + 2)
        for d in range(4): a(f"v_cvt_pk_bf16_f32 v{UP+d}, 0, v{UP+d}")
        for d in range(4): a(f"v_mul_f32 v{UP+d}, v{UP+d}, v{UN+d}")
        for d in range(4): a(f"v_cvt_pk_bf16_f32 v{UP+d}, 0, v{UP+d}")
        unpack(UN, e)
        for d in range(4): a(f"v_add_f32 v{UP+d}, v{UP+d}, v{UN+d}")
        a(f"v_cvt_pk_bf16_f32 v{e}, v{UP}, v{UP+1}")
        a(f"v_cvt_pk_bf16_f32 v{e+1}, v{UP+2}, v{UP+3}")
        a(f"buffer_store_dwordx2 v[{e}:{e+1}], v{e+4}, s[28:31], 0 offen")
    fin_slot(0)
    a("s_cmp_ge_u32 s6, 4")
    a("s_cbranch_scc1 Lc_done")
    fin_slot(1)
    a("Lc_done:")
    if "stamp" in EXP:
        stamp(a)
        rstamp(a, 63)
        a("s_lshl_b32 s4, s2, 12")
        a(f"s_add_u32 s4, s4, {STAMP_OFF}")
        a("v_lshlrev_b32 v126, 2, v0")
        a("buffer_store_dword v127, v126, s[20:23], s4 offen")
    a("Lc_end:")
    a("s_endpgm")

    a("Lc_slow:")
    sD, sP, sN = RAW(1), RAW(1) + 2, RAW(1) + 4
    vL12, vAD = RAW(3), RAW(3) + 1
    sJ, sNx, sW0, sDc, sOff = 36, 37, 38, 39, 40
    table_load(sD, sP, sN)
    Z = PR(0)
    for i in range(4): a(f"v_mov_b32 v{Z+i}, 0")
    a(f"v_lshlrev_b32 v{TM}, 4, v0")
    a(f"v_add_u32 v{TM}, {BUF}, v{TM}")
    for i in range(3): a(f"ds_write_b128 v{TM}, v[{Z}:{Z+3}] offset:{16384*i}")
    a(f"v_mul_u32_u24 v{vL12}, 12, v{vLane}")
    a("s_waitcnt vmcnt(0)")
    table_scan(sD, sP, sN, RECOFF)
    a(f"s_mov_b32 s{sJ}, 0")
    a(f"s_mov_b32 s{sNx}, 0")
    a(f"s_mov_b32 s{sDc}, {MARK:#x}")
    for i in range(8): a(f"v_mov_b32 v{AC+i}, 0")
    sWin = 41
    a(f"s_mov_b32 s{sMx}, 0")
    a(f"s_mov_b32 s{sW0}, -64")
    a(f"s_add_u32 s{sWin}, s{sTot}, 63")
    a(f"s_lshr_b32 s{sWin}, s{sWin}, 6")
    a("s_waitcnt lgkmcnt(0)")
    a("s_barrier")
    a("Lc_slow_loop:")
    a(f"s_cmp_le_i32 s{sWin}, 0")
    a("s_cbranch_scc1 Lc_slow_done")
    a(f"s_sub_u32 s{sWin}, s{sWin}, 1")
    a(f"s_add_u32 s{sW0}, s{sW0}, 64")
    a(f"s_mul_i32 s{sOff}, s{sW0}, 12")
    a(f"v_add_u32 v{vAD}, s{sDc}, v{vL12}")
    a("Lc_run:")
    a(f"s_sub_u32 s4, s{sNx}, s{sW0}")
    a("s_cmp_ge_i32 s4, 64")
    a("s_cbranch_scc1 Lc_built")
    a("s_max_i32 s4, s4, 0")
    a(f"s_cmp_lg_u32 s{sJ}, 64")
    a("s_cbranch_scc1 Lc_cont")
    a("s_mov_b64 exec, -1")
    a(f"v_mov_b32 v{sD}, v{sD+1}")
    a(f"v_mov_b32 v{sP}, v{sP+1}")
    a(f"v_mov_b32 v{sD+1}, {MARK:#x}")
    a(f"v_mov_b32 v{sP+1}, 0x7fffffff")
    a(f"s_mov_b32 s{sJ}, 0")
    a("Lc_cont:")
    a(f"v_readlane_b32 s{sDc}, v{sD}, s{sJ}")
    a(f"v_readlane_b32 s{sNx}, v{sP}, s{sJ}")
    a("s_lshl_b64 exec, -1, s4")
    a(f"s_add_u32 s{sJ}, s{sJ}, 1")
    a(f"v_add_u32 v{vAD}, s{sDc}, v{vL12}")
    a("s_branch Lc_run")
    a("Lc_built:")
    a("s_mov_b64 exec, -1")
    r = RAW(0)
    a(f"buffer_load_dwordx3 v[{r}:{r+2}], v{vAD}, s[20:23], s{sOff} offen")
    a("s_waitcnt vmcnt(0)")
    cvt_c(r)
    for h in range(2):
        a(f"v_and_b32 v{GAT(h)}, 0x7ffff, v{r+2*h}")
        a(f"buffer_load_dwordx2 v[{GAT(h)}:{GAT(h)+1}], v{GAT(h)}, s[12:15], 0 idxen")
    for h in range(2): proc_pre(r + 2 * h, r + 2 * h + 1, PR(h))
    a("s_waitcnt vmcnt(0) lgkmcnt(0)")
    for h in range(2):
        a(f"v_cmpx_ne_u32 vcc, 0, v{r+2*h}")
        proc_s(GAT(h), PR(h))
        a(f"v_add_u32 v{PR(h)+6}, {BUF}, v{PR(h)+6}")
        for d in range(4): a(f"v_mul_f32 v{TT+d}, v{mdreg(GAT(h), d)}, v{TT+d}")
        for d in range(4): a(f"v_cvt_f64_f32 v[{XR(0)+2*d}:{XR(0)+2*d+1}], v{TT+d}")
        for d in range(4): a(f"ds_add_f64 v{PR(h)+6}, v[{XR(0)+2*d}:{XR(0)+2*d+1}] offset:{d*SL*8}")
        a("s_mov_b64 exec, -1")
    a("s_branch Lc_slow_loop")
    a("Lc_slow_done:")
    a("s_waitcnt lgkmcnt(0)")
    a("s_barrier")
    a(f"v_lshlrev_b32 v{TM}, 3, v0")
    a(f"v_add_u32 v{TM}, {BUF}, v{TM}")
    for h in range(2):
        for d in range(4):
            a(f"ds_read_b64 v[{PR(0)+8*h+2*d}:{PR(0)+8*h+2*d+1}], v{TM} offset:{d*SL*8+8192*h}")
    a("s_waitcnt lgkmcnt(0)")
    for i in range(8):
        a(f"v_cvt_f32_f64 v{TM}, v[{PR(0)+2*i}:{PR(0)+2*i+1}]")
        a(f"v_add_f32 v{AC+i}, v{AC+i}, v{TM}")
    a("s_branch Lc_fin")
    return 128, 102

def desc(name, vgpr, sgpr):
    v4 = -(-vgpr // 4) * 4
    return f""".amdhsa_kernel {name}
  .amdhsa_next_free_vgpr {vgpr}
  .amdhsa_next_free_sgpr {sgpr}
  .amdhsa_accum_offset {v4}
  .amdhsa_group_segment_fixed_size 0
  .amdhsa_kernarg_size 112
  .amdhsa_user_sgpr_count 2
  .amdhsa_user_sgpr_kernarg_segment_ptr 1
  .amdhsa_system_sgpr_workgroup_id_x 1
  .amdhsa_float_denorm_mode_32 3
.end_amdhsa_kernel
"""

def build(c):
    ap, ac = Asm(), Asm()
    pv, ps = gen_P(ap, c)
    cv, cs = gen_C(ac, c)
    out = HEADER
    out += f"; @launch kernel=p_kernel grid=({c.PGRID},1,1) block=({c.PT},1,1) lds={c.PLDS}\n"
    out += f"; @launch kernel=c_kernel grid=(256,1,1) block=(1024,1,1) lds={CLDS}\n"
    out += '.amdgcn_target "amdgcn-amd-amdhsa--gfx950"\n.text\n'
    for name, body in (("p_kernel", ap), ("c_kernel", ac)):
        out += f".globl {name}\n.p2align 8\n.type {name},@function\n" + body.padded()
    out += '.section .rodata,"a"\n.p2align 6\n' + desc("p_kernel", pv, ps) + ".p2align 6\n" + desc("c_kernel", cv, cs)
    return out

if __name__ == "__main__":
    ap = argparse.ArgumentParser()
    ap.add_argument("-o", default=f"cdna_kernels/{NAME}.s")
    ap.add_argument("--ld", default="")
    ap.add_argument("--st", default="")
    ap.add_argument("--rec", default="")
    ap.add_argument("--exp", default="")
    x = ap.parse_args()
    EXP.update(x.exp.split(","))
    c = Cfg(ld=x.ld, st=x.st, rec=x.rec)
    open(x.o, "w").write(build(c))
```

```python
import sys, argparse, struct
from asmlib import Asm

T = 10240000
E = 320000
NAME = "standalone__molecular_angular_gemnet__graph"
HEADER = open("cdna_kernels/%s.s.ref" % NAME).read().split("; Override launch")[0]
WS_BYTES = 268435456
EXP = set()
MDOFF = 3 << 20
MAXOFF = 7 << 20
GOFF = 8 << 20
DOFF = 10 << 20
RECOFF = 12 << 20
KAP = 1.0 / 32767.0
BIAS = 64
MARK = 0x40000000
MAGIC = 0x4B400000
STAMP_OFF = 0xC000000

def f32(x): return "0x%08x" % struct.unpack("<I", struct.pack("<f", x))[0]

def srd(a, d, lo, hi, nrec, stride=0, off=0):
    if off:
        a(f"s_add_u32 s{d}, s{lo}, {off}")
        a(f"s_addc_u32 s{d+1}, s{hi}, 0")
        a(f"s_and_b32 s{d+1}, s{d+1}, 0xffff")
    else:
        a(f"s_mov_b32 s{d}, s{lo}")
        a(f"s_and_b32 s{d+1}, s{hi}, 0xffff")
    if stride: a(f"s_or_b32 s{d+1}, s{d+1}, {stride << 16}")
    a(f"s_mov_b32 s{d+2}, {nrec}")
    a(f"s_mov_b32 s{d+3}, 0x00020000")

def wave_scan(a, regs, op="v_add_u32", halves=False):
    if isinstance(regs, int): regs = [regs]
    for sh in (1, 2, 4, 8):
        for v in regs: a(f"{op}_dpp v{v}, v{v}, v{v} row_shr:{sh} row_mask:0xf bank_mask:0xf bound_ctrl:0")
    for v in regs: a(f"{op}_dpp v{v}, v{v}, v{v} row_bcast:15 row_mask:0xa bank_mask:0xf")
    if halves: return
    for v in regs: a(f"{op}_dpp v{v}, v{v}, v{v} row_bcast:31 row_mask:0xc bank_mask:0xf")

def stamp(a, v=127):
    if "stamp" not in EXP: return
    a("s_memtime s[100:101]")
    a("s_waitcnt lgkmcnt(0)")
    a(f"v_writelane_b32 v{v}, s100, m0")
    a("s_add_u32 m0, m0, 1")

def rstamp(a, lane, v=127, flag="stamp"):
    if flag not in EXP: return
    a("s_memrealtime s[100:101]")
    a("s_waitcnt lgkmcnt(0)")
    a(f"v_writelane_b32 v{v}, s100, {lane}")

def pack_hi_aware(a, dst, lo, hi, t):
    a(f"v_cvt_pk_bf16_f32 v{t}, v{lo}, 0")
    a(f"v_and_b32 v{t+1}, 0x7fffffff, v{hi}")
    a(f"v_add_u32 v{t+1}, 0x8000, v{t+1}")
    a(f"v_sub_u32 v{t+1}, v{t+1}, v{t}")
    a(f"v_max_i32 v{t+1}, 0, v{t+1}")
    a(f"v_and_b32 v{t+1}, 0x7fff0000, v{t+1}")
    a(f"v_or_b32 v{t}, v{t}, v{t+1}")
    a(f"v_and_b32 v{t+1}, 0x80000000, v{hi}")
    a(f"v_or_b32 v{dst}, v{t}, v{t+1}")

def rbf_pairs(a, vd, dst, t, sc):
    for p in range(4):
        x, y, r = t, t + 1, dst + p
        a(f"v_subrev_f32 v{x}, s{sc+2*p}, v{vd}")
        a(f"v_subrev_f32 v{y}, s{sc+1+2*p}, v{vd}")
        for op in ("sq", "m10", "exp"):
            a(f"v_cvt_pk_bf16_f32 v{x}, 0, v{x}")
            a(f"v_cvt_pk_bf16_f32 v{y}, 0, v{y}")
            if op == "sq":
                a(f"v_mul_f32 v{x}, v{x}, v{x}")
                a(f"v_mul_f32 v{y}, v{y}, v{y}")
            elif op == "m10":
                a(f"v_mul_f32 v{x}, 0xc1200000, v{x}")
                a(f"v_mul_f32 v{y}, 0xc1200000, v{y}")
            else:
                a(f"v_mul_f32 v{x}, 0x3fb8aa3b, v{x}")
                a(f"v_mul_f32 v{y}, 0x3fb8aa3b, v{y}")
                a(f"v_exp_f32 v{x}, v{x}")
                a(f"v_exp_f32 v{y}, v{y}")
        a(f"v_cvt_pk_bf16_f32 v{r}, v{x}, v{y}")

def edge_of_slot(a, vslot, vdst, t):
    a(f"v_lshlrev_b32 v{t}, 8, v{vslot}")
    a(f"v_and_b32 v{t}, 0xfffffc00, v{t}")
    a(f"v_and_or_b32 v{vdst}, v{vslot}, 3, v{t}")
    a(f"v_or_b32 v{vdst}, s3, v{vdst}")

class Cfg:
    def __init__(s, ld="", st="", rec=""):
        s.NQ = 4
        s.n = 20000
        s.NC = T // s.n
        s.NB = 256 * s.NQ
        s.CS = -(-(s.n + s.NB) * 6 // 128) * 128
        s.ld = (" " + ld) if ld else ""
        s.st = (" " + st) if st else ""
        s.rec = (" " + rec) if rec else ""
        s.NMAX = 256
        s.side = "" if "sideplain" in EXP else " sc1"
        s.PT = 1024

QC = (1 << 32) * 4 // E
QGAP = 131072 - E // 4

class VM:
    def __init__(s, a): s.a, s.q = a, []
    def issue(s, tag, text): s.a(text); s.q.append(tag)
    def wait(s, *tags):
        k = max(len(s.q) - 1 - s.q[::-1].index(t) for t in tags)
        s.a(f"s_waitcnt vmcnt({len(s.q) - 1 - k})")

class Sched:
    def __init__(s, a): s.a, s.v, s.l, s.vd, s.ld = a, [], [], 0, 0
    def vm(s, tag): s.v.append(tag)
    def ds(s, tag, n=1): s.l += [tag] * n
    def _cnt(s, q, done, tags, cap):
        ks = [len(q) - 1 - q[::-1].index(t) for t in tags if t in q]
        if not ks or max(ks) < done: return None, done
        n = min(len(q) - 1 - max(ks), cap)
        return n, len(q) - n
    def need(s, v=(), l=()):
        nv, s.vd = s._cnt(s.v, s.vd, v, 63)
        nl, s.ld = s._cnt(s.l, s.ld, l, 15)
        parts = ([f"vmcnt({nv})"] if nv is not None else []) + ([f"lgkmcnt({nl})"] if nl is not None else [])
        if parts: s.a("s_waitcnt " + " ".join(parts))
    def drain_l(s): s.a("s_waitcnt lgkmcnt(0)"); s.ld = len(s.l)
    def copy(s, a):
        t = Sched(a); t.v, t.l, t.vd, t.ld = list(s.v), list(s.l), s.vd, s.ld; return t

def gen_P(a, c):
    NB = c.NB
    HS = lambda s: s * NB * 4
    CUR = 2 * NB * 4
    MISC = 3 * NB * 4
    R0 = MISC + 32
    TSTG = R0 + (c.n + NB) * 6
    c.PLDS = TSTG + 8192
    c.PGRID = 256
    vO = lambda s, j: 4 + 50 * s + j
    vI = lambda s, j: 24 + 50 * s + j
    vA = lambda s, j: 44 + 50 * s + j
    S, X, TMP = 104, 120, 124
    vm = VM(a)
    a("p_kernel:")
    a("s_cmp_ge_u32 s2, 256")
    a("s_cbranch_scc1 Lp_end")
    pst = [0]
    def ps():
        if "pstamp" not in EXP: return
        a("s_memrealtime s[100:101]" if pst[0] in (0,) else "s_memtime s[100:101]")
        a("s_waitcnt lgkmcnt(0)")
        a(f"s_mov_b32 s{(32, 39)[pst[0]] if pst[0] < 2 else 64+pst[0]}, s100")
        if pst[0] == 2:
            a("s_mov_b32 s64, s32")
            a("s_mov_b32 s65, s39")
        pst[0] += 1
    ps(); ps()
    a("s_load_dwordx4 s[4:7], s[0:1], 8")
    a("s_load_dwordx2 s[8:9], s[0:1], 32")
    a("s_load_dwordx2 s[10:11], s[0:1], 104")
    a("s_load_dwordx2 s[44:45], s[0:1], 0")
    a("s_load_dwordx2 s[46:47], s[0:1], 72")
    a("s_load_dwordx4 s[64:67], s[0:1], 56")
    a("s_load_dwordx2 s[68:69], s[0:1], 24")
    a("s_load_dwordx2 s[70:71], s[0:1], 40")
    a("v_lshlrev_b32 v1, 4, v0")
    a("v_lshlrev_b32 v2, 3, v0")
    a(f"v_mov_b32 v{S}, 0")
    a(f"v_mov_b32 v{S+1}, 0")
    a(f"ds_write_b64 v2, v[{S}:{S+1}]")
    a(f"ds_write_b64 v2, v[{S}:{S+1}] offset:{MISC}")
    a("v_lshrrev_b32 v3, 6, v0")
    a("v_readfirstlane_b32 s33, v3")
    a("v_cmpx_gt_u32 vcc, 1000, v0")
    a("s_mul_i32 s34, s2, 160000")
    a("s_lshr_b32 s36, s34, 1")
    a("s_waitcnt lgkmcnt(0)")
    srd(a, 16, 6, 7, T * 4)
    srd(a, 12, 4, 5, T * 4)
    def ld(kind, s, g):
        if kind == "A":
            a(f"s_add_u32 s35, s36, {(5*s+g)*8000}")
            vm.issue(("A", s, g), f"buffer_load_dwordx2 v[{vA(s,2*g)}:{vA(s,2*g)+1}], v2, s[20:23], s35 offen{c.ld}")
        else:
            r, sr = (vO(s, 4*g), 16) if kind == "O" else (vI(s, 4*g), 12)
            a(f"s_add_u32 s35, s34, {(5*s+g)*16000}")
            vm.issue((kind, s, g), f"buffer_load_dwordx4 v[{r}:{r+3}], v1, s[{sr}:{sr+3}], s35 offen{c.ld}")
    ld("O", 0, 0); ld("I", 0, 0)
    a("s_load_dwordx8 s[56:63], s[46:47], 0")
    a("s_load_dwordx4 s[96:99], s[70:71], 0")
    srd(a, 48, 44, 45, E * 8)
    srd(a, 52, 68, 69, E * 2)
    M = S
    DI, RB, GG, T2 = vO(1, 0), vO(1, 2), vO(1, 6), vO(1, 22)
    a("s_lshl_b32 s3, s2, 3")
    a(f"v_lshlrev_b32 v{T2}, 11, v0")
    a("s_mul_i32 s41, s2, 10000")
    a("s_add_u32 s42, s41, 8000")
    vm.issue("d0", f"buffer_load_dwordx2 v[{DI}:{DI+1}], v{T2}, s[52:55], s3 offen")
    vm.issue("m0", f"buffer_load_dwordx2 v[{M}:{M+1}], v2, s[48:51], s41 offen")
    vm.issue("m1", f"buffer_load_dwordx2 v[{M+2}:{M+3}], v2, s[48:51], s42 offen")
    ld("O", 0, 1); ld("I", 0, 1)
    srd(a, 20, 8, 9, T * 2)
    srd(a, 28, 10, 11, RECOFF)
    for s in range(2):
        d = (24, 52)[s]
        a(f"s_mul_i32 s37, s2, {2*c.CS}")
        a(f"s_add_u32 s37, s37, {RECOFF + s*c.CS}")
        a(f"s_add_u32 s{d}, s10, s37")
        a(f"s_addc_u32 s{d+1}, s11, 0")
        a(f"s_and_b32 s{d+1}, s{d+1}, 0xffff")
        a(f"s_mov_b32 s{d+3}, 0x00020000")
    a(f"s_mov_b32 s43, {QGAP}")
    a("s_waitcnt lgkmcnt(0)")
    for p in range(4):
        a(f"s_lshl_b32 s{88+2*p}, s{96+p}, 16")
        a(f"s_and_b32 s{89+2*p}, s{96+p}, 0xffff0000")
    a("s_barrier")
    def md_row(h):
        r = M + 2 * h
        for k in range(2):
            for d in range(4):
                op = "s_pack_hh_b32_b16" if d & 1 else "s_pack_ll_b32_b16"
                a(f"{op} s40, s{56 + 4*k + d//2}, s{58 + 4*k + d//2}")
                a(f"v_dot2_f32_bf16 v{M+4+d}, v{r+k}, s40, {'0' if k == 0 else 'v%d' % (M+4+d)}")
        a(f"s_mul_i32 s40, s2, 1250")
        a(f"s_add_u32 s40, s40, {1000*h}")
        a(f"v_add_u32 v{M+10}, s40, v0")
        a(f"v_max3_f32 v{M+11}, |v{M+4}|, |v{M+5}|, |v{M+6}|")
        a(f"v_max_f32 v{M+11}, v{M+11}, |v{M+7}|")
        a(f"v_mov_b32 v{M+12}, {MISC+8}")
        a(f"ds_max_u32 v{M+12}, v{M+11}")
        pack_hi_aware(a, r, M + 4, M + 5, M + 8)
        pack_hi_aware(a, r + 1, M + 6, M + 7, M + 8)
        a(f"v_mul_hi_u32_u24 v{M+8}, {QC}, v{M+10}")
        a(f"v_mad_u32_u24 v{M+10}, v{M+8}, s43, v{M+10}")
        a(f"v_lshlrev_b32 v{M+10}, 3, v{M+10}")
        a(f"s_mov_b32 s40, {MDOFF + BIAS*8}")
        a(f"buffer_store_dwordx2 v[{r}:{r+1}], v{M+10}, s[28:31], s40 offen{c.side}")
    def g_slot(h, fill):
        a("s_lshl_b32 s40, s2, 24")
        a(f"v_lshl_add_u32 v{DI+h}, v0, 16, s40")
        a("s_load_dwordx8 s[72:79], s[66:67], 0")
        a("s_load_dwordx4 s[80:83], s[66:67], 32")
        a("s_load_dwordx4 s[84:87], s[64:65], 0")
        rbf_pairs(a, DI + h, RB, T2, 88)
        for i in range(4):
            if i < len(fill): fill[i]()
            a("s_waitcnt lgkmcnt(0)")
            for l in range(4):
                for d in range(4):
                    op = "s_pack_hh_b32_b16" if d & 1 else "s_pack_ll_b32_b16"
                    x, y = (72 + 2*l, 72 + 2*(3+l)) if l < 3 else (84, 86)
                    a(f"{op} s40, s{x + d//2}, s{y + d//2}")
                    g = GG + 4 * l + d
                    a(f"v_dot2_f32_bf16 v{g}, v{RB+i}, s40, {'0' if i == 0 else 'v%d' % g}")
            if i < 3:
                a(f"s_load_dwordx8 s[72:79], s[66:67], {48*(i+1)}")
                a(f"s_load_dwordx4 s[80:83], s[66:67], {48*(i+1)+32}")
                a(f"s_load_dwordx4 s[84:87], s[64:65], {16*(i+1)}")
        R = RB
        for d in range(4): a(f"v_add_f32 v{R+d}, |v{GG+d}|, |v{GG+4+d}|")
        for d in range(4): a(f"v_add_f32 v{R+d}, v{R+d}, |v{GG+8+d}|")
        for d in range(4): a(f"v_cvt_pk_bf16_f32 v{GG+12+d}, 0, v{GG+12+d}")
        a(f"v_max3_f32 v{R}, v{R}, v{R+1}, v{R+2}")
        a(f"v_max_f32 v{R}, v{R}, v{R+3}")
        a(f"v_mul_f32 v{R}, {f32(1.03)}, v{R}")
        a(f"v_frexp_exp_i32_f32 v{R+3}, v{R}")
        a(f"v_sub_u32 v{T2}, 0, v{R+3}")
        for d in range(4): a(f"v_ldexp_f32 v{GG+12+d}, v{GG+12+d}, v{R+3}")
        for l in range(3):
            for d in range(4):
                a(f"v_ldexp_f32 v{GG+4*l+d}, v{GG+4*l+d}, v{T2}")
                a(f"v_mul_f32 v{GG+4*l+d}, {f32((1, 2, 4)[l] * KAP ** (l+1))}, v{GG+4*l+d}")
        for d in range(4): a(f"v_cvt_pk_bf16_f32 v{GG+d}, v{GG+d}, v{GG+4+d}")
        a(f"v_cvt_pk_bf16_f32 v{GG+6}, v{GG+12}, v{GG+13}")
        a(f"v_cvt_pk_bf16_f32 v{GG+7}, v{GG+14}, v{GG+15}")
        pack_hi_aware(a, GG + 4, GG + 8, GG + 9, T2)
        pack_hi_aware(a, GG + 5, GG + 10, GG + 11, T2)
        a("s_lshl_b32 s40, s2, 13")
        a(f"s_add_u32 s41, s40, {GOFF}")
        a(f"v_lshlrev_b32 v{T2}, 5, v0")
        a(f"ds_write_b128 v{T2}, v[{GG}:{GG+3}] offset:{R0}")
        a(f"ds_write_b128 v{T2}, v[{GG+4}:{GG+7}] offset:{R0+16}")
        a("s_lshl_b32 s40, s33, 10")
        a(f"v_add_u32 v{T2}, s40, v1")
        a(f"ds_read_b128 v[{GG+8}:{GG+11}], v{T2} offset:{R0}")
        a(f"ds_read_b128 v[{GG+12}:{GG+15}], v{T2} offset:{R0+1024}")
        a("s_waitcnt lgkmcnt(0)")
        a(f"buffer_store_dwordx4 v[{GG+8}:{GG+11}], v{T2}, s[28:31], s41 offen{c.side}")
        a(f"buffer_store_dwordx4 v[{GG+12}:{GG+15}], v{T2}, s[28:31], s41 offen offset:1024{c.side}")
    L = lambda k, s, g: (lambda: ld(k, s, g))
    PP = lambda p: (a(f"s_setprio {p}") if "pnoprio" not in EXP else None)
    PP(3)
    ld("O", 0, 2); ld("I", 0, 2)
    vm.wait("m1")
    md_row(0)
    ld("O", 0, 3); ld("I", 0, 3)
    PP(2)
    a("s_cmp_ge_u32 s33, 5")
    a("s_cbranch_scc1 Lp_nomd")
    a("s_mul_i32 s41, s2, 2560")
    a(f"s_add_u32 s41, s41, {DOFF}")
    a(f"buffer_store_dwordx2 v[{DI}:{DI+1}], v2, s[28:31], s41 offen{c.side}")
    a("v_cmpx_gt_u32 vcc, 256, v0")
    a("s_cbranch_execz Lp_nomd2")
    g_slot(0, [])
    a("v_cmpx_gt_u32 vcc, 250, v0")
    md_row(1)
    a("Lp_nomd2:")
    a("s_mov_b64 exec, -1")
    a("Lp_nomd:")
    ld("O", 0, 4); ld("I", 0, 4)
    PP(0)
    ps()

    def hist(s, g):
        vm.wait(("O", s, g), ("I", s, g))
        a("v_mov_b32 v3, 1")
        for j in range(4*g, 4*g + 4):
            o, i, t, u = vO(s, j), vI(s, j), TMP + (j & 1) * 2, TMP + 1 + (j & 1) * 2
            a(f"v_lshrrev_b32 v{t}, 8, v{o}")
            a(f"v_mul_hi_u32_u24 v{u}, {QC}, v{i}")
            a(f"v_add_u32 v{i}, {BIAS}, v{i}")
            a(f"v_bfi_b32 v{t}, 3, v{o}, v{t}")
            a(f"v_and_b32 v{u}, 3, v{u}")
            a(f"v_and_b32 v{o}, 0x3fc, v{o}")
            a(f"v_mad_u32_u24 v{i}, v{u}, s43, v{i}")
            a(f"v_lshl_or_b32 v{o}, v{u}, 10, v{o}")
            a(f"v_lshl_or_b32 v{i}, v{t}, 19, v{i}")
            a(f"ds_add_u32 v{o}, v3 offset:{HS(s)}")
    def prefix(s):
        C, R = S, S + 4
        a(f"v_and_b32 v{X}, 0x3f0, v1")
        a(f"ds_read_b128 v[{C}:{C+3}], v1 offset:{HS(s)}")
        for r in range(3):
            a(f"ds_read_b128 v[{R+4*r}:{R+4*r+3}], v{X} offset:{HS(s)+1024*r}")
        a(f"v_mov_b32 v{X+3}, 0")
        for r in range(3):
            a(f"s_cmp_gt_u32 s33, {r}")
            a(f"s_cselect_b32 s{37+r}, -1, 0")
        a("s_waitcnt lgkmcnt(0)")
        for i in range(16): a(f"v_add_u32 v{C+i}, 1, v{C+i}")
        for i in range(16): a(f"v_lshrrev_b32 v{C+i}, 1, v{C+i}")
        for r in range(3):
            a(f"v_add3_u32 v{R+4*r}, v{R+4*r}, v{R+4*r+1}, v{R+4*r+2}")
            a(f"v_add_u32 v{R+4*r}, v{R+4*r}, v{R+4*r+3}")
            a(f"v_and_b32 v{R+4*r}, s{37+r}, v{R+4*r}")
        a(f"v_add3_u32 v{X+1}, v{R}, v{R+4}, v{R+8}")
        E_ = R
        a(f"v_mov_b32 v{E_}, v{C}")
        for i in range(1, 4): a(f"v_add_u32 v{E_+i}, v{E_+i-1}, v{C+i}")
        a(f"v_lshl_or_b32 v{X+1}, v{X+1}, 16, v{E_+3}")
        wave_scan(a, X + 1)
        a(f"v_readlane_b32 s38, v{X+1}, 63")
        a(f"v_and_b32 v{X+1}, 0xffff, v{X+1}")
        a(f"v_sub_u32 v{X+1}, v{X+1}, v{E_+3}")
        a("s_lshr_b32 s38, s38, 16")
        a(f"v_add_u32 v{X+1}, s38, v{X+1}")
        for i in range(4): a(f"v_add_u32 v{E_+i}, v{E_+i}, v{X+1}")
        for i in range(4): a(f"v_mul_u32_u24 v{E_+4+i}, 12, v{E_+i}")
        for i in range(4): a(f"ds_write_b32 v{E_+4+i}, v{X+3} offset:{R0-4}")
        for i in range(4): a(f"v_sub_u32 v{E_+i}, v{E_+i}, v{C+i}")
        for i in range(4): a(f"v_mad_u32_u24 v{E_+8+i}, v{E_+i}, 12, 2")
        a(f"ds_write_b128 v1, v[{E_+8}:{E_+11}] offset:{CUR}")
        a(f"v_add_u32 v{E_+7}, 127, v{E_+7}")
        a(f"v_and_b32 v{E_+7}, -128, v{E_+7}")
        a("v_cmpx_eq_u32 vcc, 255, v0")
        a(f"ds_write_b32 v{X+3}, v{E_+7} offset:{MISC+4*s}")
        a("s_mov_b64 exec, -1")
        a("s_waitcnt lgkmcnt(0)")
        a("s_barrier")
        for i in range(4): a(f"v_lshl_or_b32 v{C+i}, v{C+i}, 16, v{E_+i}")
        a("s_and_b32 s38, s33, 1")
        a("s_lshl_b32 s38, s38, 3")
        a("s_and_b32 s39, s33, 2")
        a("s_lshl_b32 s39, s39, 1")
        a("s_add_u32 s38, s38, s39")
        a(f"s_add_u32 s38, s38, {TSTG}")
        a(f"v_lshl_add_u32 v{X}, v{X}, 3, s38")
        for i in range(4): a(f"ds_write_b32 v{X}, v{C+i} offset:{i*32+s*16}")
    def cosines(s, lo, hi):
        for p in range(lo, hi):
            t, u, r = TMP + (p & 1) * 2, TMP + 1 + (p & 1) * 2, vA(s, p)
            a(f"v_lshlrev_b32 v{t}, 16, v{r}")
            a(f"v_and_b32 v{u}, 0xffff0000, v{r}")
            for x in (t, u): a(f"v_mul_f32 v{x}, 0.15915494, v{x}")
            for x in (t, u): a(f"v_fract_f32 v{x}, v{x}")
            for x in (t, u): a(f"v_cos_f32 v{x}, v{x}")
            a(f"v_cvt_pknorm_i16_f32 v{r}, v{t}, v{u}")
    def phaseB(s, work):
        a("s_waitcnt lgkmcnt(0)")
        ps()
        a("s_barrier")
        ps()
        a("s_cmp_ge_u32 s33, 4")
        a(f"s_cbranch_scc1 Lp_skipB{s}")
        a("s_setprio 3")
        prefix(s)
        a("s_setprio 0")
        a(f"Lp_skipB{s}:")
        for f in work: f()
        a("s_cmp_lt_u32 s33, 4")
        a(f"s_cbranch_scc1 Lp_skipBB{s}")
        a("s_barrier")
        a(f"Lp_skipBB{s}:")
        ps()
    def keys(s, fill):
        a("v_mov_b32 v3, 6")
        a(f"v_mov_b32 v{X}, 0")
        a(f"ds_read_b32 v{X}, v{X} offset:{MISC+4*s}")
        def atom(g):
            for j in range(4*g, 4*g + 4):
                a(f"ds_add_rtn_u32 v{vO(s,j)}, v{vO(s,j)}, v3 offset:{CUR}")
        atom(0)
        for g in range(5):
            if g < 4: atom(g + 1)
            w = (4 if g < 4 else 0) + (4 if g > 0 else 0)
            for f in fill[g]: f()
            a(f"s_waitcnt lgkmcnt({w})")
            for j in range(4*g, 4*g + 4):
                o, t, u = vO(s, j), TMP + (j & 1) * 2, TMP + 1 + (j & 1) * 2
                a(f"v_and_b32 v{t}, -4, v{o}")
                a(f"v_and_b32 v{u}, 2, v{o}")
                a(f"ds_write_b32 v{t}, v{vI(s,j)} offset:{R0}")
                a(f"v_lshl_add_u32 v{o}, v{u}, 1, v{o}")
        a(f"v_readfirstlane_b32 s{(26, 54)[s]}, v{X}")
    def cwrites(s, fill):
        for g in range(5):
            for f in fill[g]: f()
            vm.wait(("A", s, g))
            cosines(s, 2 * g, 2 * g + 2)
            for j in range(4*g, 4*g + 4):
                hi = "_d16_hi" if j & 1 else ""
                a(f"ds_write_b16{hi} v{vO(s,j)}, v{vA(s,j//2)} offset:{R0-2}")
        a(f"v_add_u32 v{X}, 0x10000, v1")
        a("s_waitcnt lgkmcnt(0)")
        ps()
        a("s_barrier")
        ps()
        for i in range(8):
            off = R0 + i * 16000
            r, off = ("v1", off) if off < 65536 else (f"v{X}", off - 65536)
            a(f"ds_read_b128 v[{vO(s,4*i)}:{vO(s,4*i)+3}], {r} offset:{off}")
    def st(s, i):
        d = (24, 52)[s]
        a(f"s_mov_b32 s40, {i*16000}")
        vm.issue(("S", s, i), f"buffer_store_dwordx4 v[{vO(s,4*i)}:{vO(s,4*i)+3}], v1, s[{d}:{d+3}], s40 offen{c.st}")
    ST = lambda s, i: (lambda: st(s, i))

    for g in range(5):
        ld("A", 0, g)
        hist(0, g)
    ld("O", 1, 0); ld("I", 1, 0)
    phaseB(0, [L("O", 1, 1)])
    keys(0, [[], [L("I", 1, 1)], [], [L("O", 1, 2)], [L("I", 1, 2)]])
    cwrites(0, [[], [L("O", 1, 3)], [], [L("I", 1, 3)], [L("O", 1, 4)]])
    ld("I", 1, 4); hist(1, 0)
    ld("A", 1, 0); hist(1, 1)
    ld("A", 1, 1); hist(1, 2)
    ld("A", 1, 2); hist(1, 3)
    ld("A", 1, 3); hist(1, 4)
    ld("A", 1, 4)
    k0 = 3 if "mid" in EXP else (0 if "late" in EXP else 5)
    phaseB(1, [])
    keys(1, [[ST(0, g - (5 - k0))] if g >= 5 - k0 else [] for g in range(5)])
    cwrites(1, [[ST(0, k0 + g // 2)] if g % 2 == 0 and "late" not in EXP else [] for g in range(5)])
    for i in range(0 if "late" in EXP else k0 + 3, 8): st(0, i)
    a(f"v_add_u32 v{X+1}, {TSTG}, v1")
    a(f"ds_read_b128 v[{S}:{S+3}], v{X+1}")
    a(f"v_mov_b32 v{X+2}, 0")
    a(f"ds_read_b32 v{X+3}, v{X+2} offset:{MISC+8}")
    for i in range(8):
        a(f"s_waitcnt lgkmcnt({9-i})")
        st(1, i)
    if "pstamp" in EXP:
        ps()
        a("s_waitcnt vmcnt(0)")
        ps()
        a("s_memrealtime s[96:97]")
        a("s_waitcnt lgkmcnt(0)")
        a("s_mov_b64 exec, -1")
        a("v_mov_b32 v4, 0")
        for k in range(1, pst[0]): a(f"v_writelane_b32 v4, s{64+k}, {k-1}")
        a("v_writelane_b32 v4, s64, 62")
        a("v_writelane_b32 v4, s96, 63")
        srd(a, 12, 10, 11, WS_BYTES)
        a("s_lshl_b32 s40, s2, 12")
        a(f"s_add_u32 s40, s40, {STAMP_OFF}")
        a("v_lshlrev_b32 v5, 2, v0")
        a("buffer_store_dword v4, v5, s[12:15], s40 offen")
    a("s_cmp_ge_u32 s33, 8")
    a("s_cbranch_scc1 Lp_end")
    a("s_lshl_b32 s39, s2, 13")
    a("s_waitcnt lgkmcnt(0)")
    a(f"buffer_store_dwordx4 v[{S}:{S+3}], v1, s[28:31], s39 offen{c.side}")
    a("v_cmpx_eq_u32 vcc, 0, v0")
    a("s_cbranch_execz Lp_end")
    a("s_lshl_b32 s39, s2, 2")
    a(f"s_add_u32 s39, s39, {MAXOFF}")
    a(f"buffer_store_dword v{X+3}, v{X+2}, s[28:31], s39 offen" + ("" if "maxplain" in EXP else c.side))
    a("Lp_end:")
    a("s_endpgm")
    return 128, 102

SL = 1280
HIST, BASE = 0, 5120
GA, GB = 10240, 10240 + 16 * SL
AC01, AC23 = GB + 8 * SL, GB + 16 * SL
GATE = GB + 24 * SL
BUF = GATE + 8 * SL
NW, NBATCH = 5, 4
NWIN = NW * NBATCH + 2
SCRW = NWIN * 256
CLDS = BUF + 16 * SCRW
assert CLDS <= 163840
FLAG = HIST + 4 * 1270
AINIT = 0x40000000

def gen_C(a, c):
    NB = c.NB
    L0 = "l1" not in EXP
    vLane, vSA, vEight, vSticky, vTot, vNegM = 1, 2, 3, 4, 5, 6
    AD = lambda i: 8 + i
    vMagic, vCode = 20, 21
    RAW = lambda w: 22 + 6 * w
    SRT = lambda i: 52 + 2 * i
    GAT = lambda i: 72 + 2 * (i % 5)
    XR = lambda i: 82 + 4 * (i % 2)
    PR = lambda i: 90 + 10 * (i % 2)
    TT = 110
    TM = 116
    PF = PR(1)
    vSA2 = 126
    sTot, sExc = 8, 9
    sG = 24
    sQ = 16
    sNext, sRem, sPass, sFirst, sLeft, sMx = 32, 33, 34, 35, 26, 27
    WM = lambda w: 36 + 2 * w
    GM = lambda i: 46 + 2 * (i % 5)
    SC = 56

    def proc_pre(vKey, vC, R):
        g, la, c01, c2, t = R, R + 6, R + 7, R + 8, R + 9
        a(f"v_lshrrev_b32 v{la}, 16, v{vKey}")
        a(f"v_fmaak_f32 v{c01}, v{vC}, v{vC}, {f32(-0.5/KAP/KAP)}")
        a(f"v_and_b32 v{la}, 0xfff8, v{la}")
        a(f"v_add_f32 v{c2}, {f32(-0.25/KAP/KAP)}, v{c01}")
        a(f"v_add_u32 v{t}, v{la}, v{la}")
        if "nog" in EXP:
            a("ds_nop"); a("ds_nop")
        else:
            a(f"ds_read_b64 v[{g+4}:{g+5}], v{la} offset:{GB}")
            a(f"ds_read_b128 v[{g}:{g+3}], v{t} offset:{GA}")
        a(f"v_mul_f32 v{c2}, v{c2}, v{vC}")
        a(f"v_cvt_pk_bf16_f32 v{c01}, v{vC}, v{c01}")
    def proc_s(vM, R):
        g, la, c01, c2 = R, R + 6, R + 7, R + 8
        a(f"v_lshlrev_b32 v{TT}, 16, v{g+4}")
        a(f"v_mul_f32 v{TT+1}, v{g+4}, v{c2}")
        a(f"v_lshlrev_b32 v{TT+2}, 16, v{g+5}")
        a(f"v_mul_f32 v{TT+3}, v{g+5}, v{c2}")
        a(f"v_mul_f32 v{TT}, v{TT}, v{c2}")
        a(f"v_mul_f32 v{TT+2}, v{TT+2}, v{c2}")
        for d in (1, 3, 0, 2):
            a(f"v_dot2c_f32_bf16 v{TT+d}, v{g+d}, v{c01}")
        a(f"v_lshlrev_b32 v{TT+4}, 16, v{vM}")
        a(f"v_lshlrev_b32 v{TT+5}, 16, v{vM+1}")
    mdreg = lambda vM, d: (TT + 4, vM, TT + 5, vM + 1)[d]
    def sticky(X):
        a(f"v_bitop3_b32 v{vSticky}, v{vSticky}, v{X}, v{X+1} bitop3:0xfe")
        a(f"v_bitop3_b32 v{vSticky}, v{vSticky}, v{X+2}, v{X+3} bitop3:0xfe")
    def proc_post(vM, R, X):
        la = R + 6
        proc_s(vM, R)
        for d in (1, 3, 0, 2):
            a(f"v_fma_f32 v{X+d}, v{mdreg(vM, d)}, v{TT+d}, v{vMagic}")
        a(f"v_lshl_add_u64 v[{X}:{X+1}], v[{X}:{X+1}], 0, v[{vNegM}:{vNegM+1}]")
        a(f"v_lshl_add_u64 v[{X+2}:{X+3}], v[{X+2}:{X+3}], 0, v[{vNegM}:{vNegM+1}]")
        if "noatom" in EXP:
            a("ds_nop"); a("ds_nop")
            for d in range(4): a(f"v_mov_b32 v{X+d}, 0")
        else:
            a(f"ds_add_rtn_u64 v[{X}:{X+1}], v{la}, v[{X}:{X+1}] offset:{AC01}")
            a(f"ds_add_rtn_u64 v[{X+2}:{X+3}], v{la}, v[{X+2}:{X+3}] offset:{AC23}")
    def table_load(vD, vP, t):
        a("s_lshl_b32 s4, s6, 5")
        a(f"v_and_or_b32 v{t}, v{vLane}, 31, s4")
        a(f"v_lshrrev_b32 v{t+1}, 1, v{t}")
        a(f"v_lshlrev_b32 v{t+1}, 13, v{t+1}")
        a(f"v_lshlrev_b32 v{t+2}, 4, v{t}")
        a(f"v_and_or_b32 v{t+1}, v{t+2}, 16, v{t+1}")
        a(f"v_lshrrev_b32 v{t+2}, 2, v{vLane}")
        a(f"v_and_or_b32 v{t+1}, v{t+2}, 8, v{t+1}")
        a("s_lshl_b32 s4, s3, 3")
        a(f"buffer_load_dwordx2 v[{vP}:{vP+1}], v{t+1}, s[20:23], s4 offen")
        a(f"v_mul_u32_u24 v{vD}, {c.CS}, v{t}")
    def table_scan(vD, vP, vN, add):
        for i in range(2):
            a(f"v_and_b32 v{vN+2+i}, 0xffff, v{vP+i}")
            a(f"v_lshrrev_b32 v{vN+i}, 16, v{vP+i}")
            a(f"v_mov_b32 v{vP+i}, v{vN+i}")
        wave_scan(a, [vP, vP + 1])
        a(f"v_readlane_b32 s{sTot}, v{vP}, 63")
        a(f"v_add_u32 v{vD}, {add & 0xffffffff}, v{vD}")
        for i in range(2): a(f"v_add_u32 v{vN+2+i}, v{vN+2+i}, v{vN+i}")
        a(f"v_add_u32 v{vP+1}, s{sTot}, v{vP+1}")
        for i in range(2): a(f"v_sub_u32 v{vN+2+i}, v{vN+2+i}, v{vP+i}")
        a(f"v_readlane_b32 s{sTot}, v{vP+1}, 63")
        a(f"v_mad_i32_i24 v{vD+1}, v{vN+3}, 12, v{vD}")
        a(f"v_mad_i32_i24 v{vD}, v{vN+2}, 12, v{vD}")

    a("c_kernel:")
    a("s_cmp_ge_u32 s2, 256")
    a("s_cbranch_scc1 Lc_end")
    if "stamp" in EXP:
        a("s_mov_b32 m0, 0")
        a("v_mov_b32 v127, 0")
    rstamp(a, 62)
    stamp(a)
    a("s_setprio 3")
    a("s_load_dwordx2 s[10:11], s[0:1], 104")
    a("s_load_dwordx2 s[64:65], s[0:1], 0")
    a("s_load_dwordx4 s[68:71], s[0:1], 80")
    a("s_and_b32 s3, s2, 7")
    a("s_lshl_b32 s3, s3, 5")
    a("s_lshr_b32 s4, s2, 3")
    a("s_or_b32 s3, s3, s4")
    a("s_lshl_b32 s3, s3, 2")
    Q = 108
    vD, vP, vN = Q + 2, Q + 4, Q + 6
    vDi, vMx, T2, Z = 90, 92, 98, 98
    RB = lambda h: XR(0) + 4 * h
    ST1 = lambda w: 104 + 4 * w
    CAP = NW * 64
    a(f"v_lshrrev_b32 v{Q}, 6, v0")
    a(f"v_and_b32 v{vLane}, 63, v0")
    a(f"v_readfirstlane_b32 s6, v{Q}")
    a(f"v_mov_b32 v{Z+8}, 0")
    a(f"v_mov_b32 v{Z+9}, 0")
    a(f"v_lshlrev_b32 v{Q}, 3, v0")
    a(f"ds_write_b64 v{Q}, v[{Z+8}:{Z+9}] offset:{HIST}")
    a(f"s_mul_i32 s7, s6, {SCRW}")
    a(f"s_add_u32 s7, s7, {BUF}")
    a(f"v_lshl_add_u32 v{Q}, v{vLane}, 4, s7")
    for i in range(4): a(f"v_mov_b32 v{Z+i}, 12")
    a("s_waitcnt lgkmcnt(0)")
    srd(a, 20, 10, 11, WS_BYTES)
    table_load(vD, vP, vN)
    a("s_mul_i32 s4, s3, 640")
    a(f"s_add_u32 s4, s4, {DOFF}")
    a(f"v_lshlrev_b32 v96, 1, v0")
    a(f"buffer_load_ushort v{vDi}, v96, s[20:23], s4 offen")
    a(f"buffer_load_ushort v{vDi+1}, v96, s[20:23], s4 offen offset:2048")
    a(f"v_lshlrev_b32 v96, 4, v{vLane}")
    a(f"s_mov_b32 s4, {MAXOFF}")
    a(f"buffer_load_dwordx4 v[{vMx}:{vMx+3}], v96, s[20:23], s4 offen")
    a("s_barrier")
    for i in range(NWIN // 4):
        a(f"ds_write_b128 v{Q}, v[{Z}:{Z+3}] offset:{1024*i}")
    a(f"v_lshl_add_u32 v{Q+1}, v{vLane}, 2, s7")
    for i in range(NWIN // 4 * 4, NWIN):
        a(f"ds_write_b32 v{Q+1}, v{Z} offset:{256*i}")
    srd(a, 12, 10, 11, 4 * 131072, stride=8, off=MDOFF)
    a(f"v_add_u32 v{vD}, {(RECOFF - MARK) & 0xffffffff}, v{vD}")
    a(f"v_lshrrev_b32 v{Q}, 5, v{vLane}")
    a(f"v_mul_u32_u24 v{Q}, {CAP}, v{Q}")
    a(f"s_movk_i32 s4, {CAP}")
    if 'stamp2' in EXP: stamp(a)
    a("s_waitcnt vmcnt(3)")
    if 'stamp2' in EXP: stamp(a)
    vS, vT = vN, vN + 2
    for i in range(2):
        a(f"v_and_b32 v{vT+i}, 0xffff, v{vP+i}")
        a(f"v_lshrrev_b32 v{vS+i}, 16, v{vP+i}")
        a(f"v_mov_b32 v{vP+i}, v{vS+i}")
    wave_scan(a, [vP, vP + 1], halves=True)
    for i in range(2): a(f"v_sub_u32 v{vS+i}, v{vP+i}, v{vS+i}")
    for q in range(4): a(f"v_readlane_b32 s{sQ+q}, v{vP+q//2}, {31+32*(q&1)}")
    for i in range(2): a(f"v_sub_u32 v{vT+i}, v{vT+i}, v{vS+i}")
    a(f"v_mad_i32_i24 v{vD+1}, v{vT+1}, 12, v{vD}")
    a(f"v_mad_i32_i24 v{vD}, v{vT}, 12, v{vD}")
    for i in range(2):
        if i: a(f"v_add_u32 v{Q}, {2*CAP}, v{Q}")
        a(f"v_min_u32 v{vT}, s4, v{vS+i}")
        a(f"v_min_u32 v{vT+1}, s4, v{vP+i}")
        a(f"v_mad_i32_i24 v{vT+2}, v{Q}, -12, v{vD+i}")
        a(f"v_add_u32 v{vT}, v{vT}, v{Q}")
        a(f"v_add_u32 v{vT+1}, v{vT+1}, v{Q}")
        a(f"v_lshl_add_u32 v{vT}, v{vT}, 2, s7")
        a(f"v_lshl_add_u32 v{vT+1}, v{vT+1}, 2, s7")
        a(f"ds_add_u32 v{vT}, v{vT+2}")
        a(f"ds_sub_u32 v{vT+1}, v{vT+2}")
    WA = [GAT(0) + i for i in range(10)] + [AD(i) for i in range(12)]
    for i in range(2 * NW):
        a(f"ds_read_b32 v{WA[i]}, v{Q+1} offset:{256*i}")
    a(f"s_mov_b32 s5, {MARK-12:#x}")
    def addr_scan(regs):
        wave_scan(a, regs)
        for k, v in enumerate(regs): a(f"v_readlane_b32 s{SC+k}, v{v}, 63")
        for k, v in enumerate(regs):
            a(f"v_add_u32 v{v}, s5, v{v}")
            a(f"s_add_u32 s5, s5, s{SC+k}")
    def raw_load(w, va, dst=None):
        dst = RAW(w) if dst is None else dst
        a(f"buffer_load_dwordx3 v[{dst}:{dst+2}], v{va}, s[20:23], 0 offen{c.rec}")
    a(f"s_waitcnt lgkmcnt({NW})")
    if 'stamp2' in EXP: stamp(a)
    addr_scan(WA[0:5])
    for w in range(NW): raw_load(w, WA[w])
    a("s_setprio 1")
    stamp(a)
    a(f"s_movk_i32 s{sExc}, {(NBATCH-1)*CAP}")
    a(f"s_movk_i32 s8, {NWIN*64}")
    for i in range(2):
        for hq in range(2):
            q = 2 * i + hq
            a(f"s_mov_b32 s{SC+hq}, s{sExc}")
            a(f"s_sub_u32 s{SC+2}, s{sQ+q}, s4")
            a(f"s_max_i32 s{SC+2}, s{SC+2}, 0")
            a(f"s_add_u32 s{sExc}, s{sExc}, s{SC+2}")
            a(f"s_min_u32 s{sQ+q}, s{sQ+q}, s4")
        a(f"v_mov_b32 v{Q}, s{SC}")
        a("s_mov_b32 exec_lo, 0")
        a(f"v_mov_b32 v{Q}, s{SC+1}")
        a("s_mov_b32 exec_lo, -1")
        a(f"v_max_u32 v{vT}, s4, v{vS+i}")
        a(f"v_mad_i32_i24 v{vT+2}, v{Q}, -12, v{vD+i}")
        a(f"v_add_u32 v{vT}, v{vT}, v{Q}")
        a(f"v_add_u32 v{vT+1}, v{vP+i}, v{Q}")
        a(f"v_lshl_add_u32 v{vT+3}, v{vT}, 2, s7")
        a(f"v_lshl_add_u32 v{vT+4}, v{vT+1}, 2, s7")
        a(f"v_cmpx_lt_u32 vcc, s4, v{vP+i}")
        a(f"v_cmpx_gt_u32 vcc, s8, v{vT}")
        a(f"ds_add_u32 v{vT+3}, v{vT+2}")
        a(f"v_cmpx_gt_u32 vcc, s8, v{vT+1}")
        a(f"ds_sub_u32 v{vT+4}, v{vT+2}")
        a("s_mov_b64 exec, -1")
    a(f"s_sub_u32 s{sExc}, s{sExc}, {(NBATCH-1)*CAP}")
    for i in range(2 * NW, NWIN):
        a(f"ds_read_b32 v{WA[i]}, v{Q+1} offset:{256*i}")
    for i in range(4): a(f"v_mov_b32 v{Z+4+i}, {AINIT:#x}")
    a(f"v_lshlrev_b32 v{Q}, 4, v0")
    a(f"ds_write_b128 v{Q}, v[{Z+4}:{Z+7}] offset:{AC01}")
    a(f"v_lshlrev_b32 v{Q}, 2, v0")
    a(f"ds_write_b32 v{Q}, v{Z+4} offset:{AC01+16384}")
    a(f"s_mul_i32 s4, s6, {512 if L0 else NW*128*8}")
    a(f"s_add_u32 s4, s4, {BUF}")
    a(f"v_lshl_add_u32 v{vSA}, v{vLane}, 3, s4")
    a(f"v_add_u32 v{vSA2}, 0x10000, v{vSA}")
    a(f"v_mov_b32 v{vEight}, 8")
    a(f"v_mov_b32 v{vSticky}, 0")
    a("s_waitcnt lgkmcnt(0)")
    addr_scan(WA[5:10])
    a("s_load_dwordx8 s[72:79], s[68:69], 0")
    def next_q():
        a(f"s_mov_b32 s{sLeft}, s{sQ}")
        for q in range(3): a(f"s_mov_b32 s{sQ+q}, s{sQ+q+1}")
        a(f"s_mov_b32 s{sQ+3}, 0")
    GQ = lambda h: (82, 90)[h]
    def g_load():
        a(f"v_lshlrev_b32 v{T2}, 5, v{vDi}")
        a(f"v_lshlrev_b32 v{T2+1}, 5, v{vDi+1}")
        a(f"s_mov_b32 s{sG}, {GOFF}")
        for h in range(2):
            if h:
                a("s_cmp_ge_u32 s6, 4")
                a("s_cbranch_scc1 Lc_g2skip")
            a(f"buffer_load_dwordx4 v[{GQ(h)}:{GQ(h)+3}], v{T2+h}, s[20:23], s{sG} offen")
            a(f"buffer_load_dwordx4 v[{GQ(h)+4}:{GQ(h)+7}], v{T2+h}, s[20:23], s{sG} offen offset:16")
        a("Lc_g2skip:")
    def g_store():
        a(f"v_lshlrev_b32 v{T2}, 4, v0")
        a(f"v_lshlrev_b32 v{T2+1}, 3, v0")
        for h in range(2):
            if h:
                a("s_cmp_ge_u32 s6, 4")
                a("s_cbranch_scc1 Lc_g3skip")
            a(f"ds_write_b128 v{T2}, v[{GQ(h)}:{GQ(h)+3}] offset:{GA+16384*h}")
            a(f"ds_write_b64 v{T2+1}, v[{GQ(h)+4}:{GQ(h)+5}] offset:{GB+8192*h}")
            if h: a(f"v_add_u32 v{T2+1}, 8192, v{T2+1}")
            a(f"ds_write_b64 v{T2+1}, v[{GQ(h)+6}:{GQ(h)+7}] offset:{GATE}")
        a("Lc_g3skip:")
    def magic():
        a(f"v_max3_u32 v{vMx}, v{vMx}, v{vMx+1}, v{vMx+2}")
        a(f"v_max_u32 v{vMx}, v{vMx}, v{vMx+3}")
        wave_scan(a, vMx, "v_max_u32")
        a(f"v_readlane_b32 s{sMx}, v{vMx}, 63")
        a(f"s_lshr_b32 s{sMx}, s{sMx}, 23")
        a(f"s_add_u32 s{sMx}, s{sMx}, 2")
        a(f"s_min_u32 s{sMx}, s{sMx}, 254")
        a(f"s_lshl_b32 s4, s{sMx}, 23")
        a("s_or_b32 s4, s4, 0x400000")
        a(f"v_mov_b32 v{vMagic}, s4")
        a(f"v_sub_u32 v{vNegM}, 0, v{vMagic}")
        a(f"v_not_b32 v{vNegM+1}, v{vMagic}")
        a(f"s_sub_u32 s{sMx}, s{sMx}, 150")

    def binaddr(dst, key):
        a(f"v_lshrrev_b32 v{dst}, 4, v{key}")
        a(f"v_and_b32 v{dst}, 0x1ffc, v{dst}")
    def hist(w):
        r = RAW(w)
        binaddr(r + 4, r); binaddr(r + 5, r + 2)
        a(f"v_cmpx_gt_i32_e64 s[{WM(w)}:{WM(w)+1}], s{sLeft}, v{vLane}")
        a(f"ds_add_rtn_u32 v{r+4}, v{r+4}, v{vEight} offset:{HIST}")
        a(f"ds_add_rtn_u32 v{r+5}, v{r+5}, v{vEight} offset:{HIST}")
        a("s_mov_b64 exec, -1")
        a(f"s_sub_u32 s{sLeft}, s{sLeft}, 64")
    def cvt_c(r):
        a(f"v_cvt_f32_i32_sdwa v{r+3}, sext(v{r+1}) dst_sel:DWORD dst_unused:UNUSED_PAD src0_sel:WORD_1")
        a(f"v_cvt_f32_i32_sdwa v{r+1}, sext(v{r+1}) dst_sel:DWORD dst_unused:UNUSED_PAD src0_sel:WORD_0")
    def base_read(w, t=TM):
        r = RAW(w)
        binaddr(t, r); binaddr(t + 1, r + 2)
        a(f"ds_read_b32 v{t}, v{t} offset:{BASE}")
        a(f"ds_read_b32 v{t+1}, v{t+1} offset:{BASE}")
        cvt_c(r)
    def scatter(w, t=TM):
        r = RAW(w)
        a(f"v_sub_u32 v{r+4}, v{t}, v{r+4}")
        a(f"v_sub_u32 v{r+5}, v{t+1}, v{r+5}")
        a(f"s_mov_b64 exec, s[{WM(w)}:{WM(w)+1}]")
        a(f"ds_write_b64 v{r+4}, v[{r}:{r+1}]")
        a(f"ds_write_b64 v{r+5}, v[{r+2}:{r+3}]")
        a("s_mov_b64 exec, -1")
    def prefix(Cn):
        X = Cn + 20
        a(f"v_mul_u32_u24 v{X}, 80, v{vLane}")
        for i in range(0, 20, 4):
            a(f"ds_read_b128 v[{Cn+i}:{Cn+i+3}], v{X} offset:{HIST+4*i}")
        for i in range(4): a(f"v_mov_b32 v{X+2+i}, 0")
        a("s_waitcnt lgkmcnt(0)")
        a(f"v_writelane_b32 v{Cn}, 0, 0")
        for i in range(1, 20):
            a(f"v_add_u32 v{Cn+i}, v{Cn+i}, v{Cn+i-1}")
        a(f"v_mov_b32 v{X+1}, v{Cn+19}")
        wave_scan(a, X + 1)
        a(f"v_sub_u32 v{X+1}, v{X+1}, v{Cn+19}")
        a(f"v_add_u32 v{X+1}, {BUF-8}, v{X+1}")
        for i in range(20):
            a(f"v_add_u32 v{Cn+i}, v{Cn+i}, v{X+1}")
        a(f"s_mov_b32 s4, {MARK:#x}")
        a(f"v_writelane_b32 v{Cn}, s4, 0")
        for i in range(0, 20, 4):
            a(f"ds_write_b128 v{X}, v[{Cn+i}:{Cn+i+3}] offset:{BASE+4*i}")
        for i in range(0, 20, 4):
            a(f"ds_write_b128 v{X}, v[{X+2}:{X+5}] offset:{HIST+4*i}")
        a("s_waitcnt lgkmcnt(5)")
    def total_read():
        a(f"ds_read_b32 v{vTot}, v{vEight} offset:{BASE+4*1279-8}")
    def total_take():
        a(f"v_readfirstlane_b32 s{sNext}, v{vTot}")
        a(f"s_sub_u32 s{sNext}, s{sNext}, {BUF-8}")
        a(f"s_lshr_b32 s{sNext}, s{sNext}, 3")
        a(f"s_mul_i32 s4, s6, {64 if L0 else NW*128}")
        a(f"s_sub_u32 s{sNext}, s{sNext}, s4")
    def slot_read(i):
        if L0: a(f"ds_read_b64 v[{SRT(i)}:{SRT(i)+1}], v{vSA if i < 8 else vSA2} offset:{8192*(i%8)}")
        else: a(f"ds_read_b64 v[{SRT(i)}:{SRT(i)+1}], v{vSA} offset:{512*i}")
    def gather(i):
        a(f"v_and_b32 v{GAT(i)}, 0x7ffff, v{SRT(i)}")
        if "nogather" in EXP: a(f"v_mov_b32 v{GAT(i)}, {BIAS}")
        a(f"v_cmpx_gt_i32_e64 s[{GM(i)}:{GM(i)+1}], s{sRem}, v{vLane}")
        a(f"buffer_load_dwordx2 v[{GAT(i)}:{GAT(i)+1}], v{GAT(i)}, s[12:15], 0 idxen")
        a("s_mov_b64 exec, -1")
        a(f"s_sub_u32 s{sRem}, s{sRem}, {1024 if L0 else 64}")
    def pre(i): proc_pre(SRT(i), SRT(i) + 1, PR(i))
    def post(i, vm, lg):
        a(f"s_waitcnt vmcnt({vm}) lgkmcnt({lg})")
        sticky(XR(i))
        a(f"s_mov_b64 exec, s[{GM(i)}:{GM(i)+1}]")
        proc_post(GAT(i), PR(i), XR(i))
        a("s_mov_b64 exec, -1")
    def prio(p):
        if "noprio" not in EXP: a(f"s_setprio {p}")
    PW = 15
    a(f"s_waitcnt vmcnt({NW})")
    magic()
    prio(2)
    next_q()
    for w in range(NW):
        a(f"s_waitcnt vmcnt({NW-1-w})")
        hist(w)
    if not ({"gA", "gC"} & EXP): g_load()
    a("s_waitcnt lgkmcnt(0)")
    stamp(a)
    a("s_barrier")
    stamp(a)
    a(f"s_cmp_lg_u32 s6, {PW}")
    a("s_cbranch_scc1 Lc_pfx0")
    prio(3)
    prefix(PF)
    a("s_barrier")
    a("s_waitcnt lgkmcnt(0)")
    a("Lc_pfx0:")
    if "gA" in EXP: g_load()
    raw_load(0, WA[5], ST1(0))
    a(f"s_cmp_eq_u32 s6, {PW}")
    a("s_cbranch_scc1 Lc_pfx1")
    a("s_barrier")
    a("Lc_pfx1:")
    stamp(a)
    total_read()
    for w in range(NW): base_read(w, SRT(w))
    for w in range(NW):
        a(f"s_waitcnt lgkmcnt({2*(NW-1)})")
        scatter(w, SRT(w))
        if w == 0 and "gC" in EXP: g_load()
        if w < 4: raw_load(w + 1, WA[6 + w], ST1(w + 1))
    total_take()
    a(f"s_mov_b32 s{sPass}, {NBATCH}")
    a(f"s_mov_b32 s{sFirst}, 1")
    a("s_waitcnt lgkmcnt(0)")
    real = a.lines
    sc = Sched(a)
    def Pre(i): pre(i); sc.ds(("G", i), 2)
    def Slot(i): slot_read(i); sc.ds(("S", i))
    def Gather(i): sc.need(l=[("S", i)]); gather(i); sc.vm(("g", i))
    def PreS(i): sc.need(l=[("S", i)]); Pre(i)
    def Post(i, tag=None, also=()):
        t = i if tag is None else tag
        sc.need(v=[("g", t)] + list(also), l=[("G", t), ("A", i % 2)])
        sticky(XR(i))
        a(f"s_mov_b64 exec, s[{GM(i)}:{GM(i)+1}]")
        proc_post(GAT(i), PR(i), XR(i))
        a("s_mov_b64 exec, -1")
        sc.ds(("A", i % 2), 2)
    def Hist(w): sc.need(v=[("R", w)]); hist(w); sc.ds(("H", w), 2)
    def Base(w, t=TM): base_read(w, t); sc.ds(("B", w), 2)
    def Scat(w, t=TM): sc.need(l=[("B", w)]); scatter(w, t); sc.ds(("W", w), 2)
    def Raw(w, mask=None):
        if mask is not None: a(f"s_mov_b64 exec, s[{mask}:{mask+1}]")
        raw_load(w, AD(w)); sc.vm(("R", w))
        if mask is not None: a("s_mov_b64 exec, -1")
    def scan_next(lbl):
        a(f"s_cmp_eq_u32 s{sPass}, 0")
        a(f"s_cbranch_scc1 {lbl}")
        addr_scan([AD(i) for i in range(5)])
        a(f"{lbl}:")
    def body():
        a("Lc_loop:")
        stamp(a)
        a(f"s_sub_u32 s{sPass}, s{sPass}, 1")
        a(f"s_cmp_lt_i32 s{sPass}, 0")
        a("s_cbranch_scc1 Lc_tail")
        body.tail = sc.copy(a)
        a("s_barrier")
        stamp(a)
        prio(2)
        a(f"s_mov_b32 s{sRem}, s{sNext}")
        for i in range(7): Slot(i)
        a(f"s_cmp_eq_u32 s{sFirst}, 1")
        a("s_cbranch_scc1 Lc_first")
        Gather(0)
        a(f"s_cmp_lg_u32 s6, {PW}")
        a("s_cbranch_scc1 Lc_nopfx")
        a(f"s_cmp_eq_u32 s{sPass}, 0")
        a("s_cbranch_scc1 Lc_nopfx")
        prio(3)
        prefix(PF)
        a("Lc_nopfx:")
        Pre(7); Slot(7)
        Post(6); Gather(1)
        lprio(1)
        Pre(8); Slot(8)
        Post(7); Gather(2)
        lprio(0)
        Pre(9); Slot(9)
        scan_next("Lc_noscan")
        Post(8); Gather(3)
        sc.need(l=[("S", 9)])
        a("Lc_joined:")
        stamp(a)
        a("s_barrier")
        stamp(a)
        prio(3)
        total_read(); sc.ds("T")
        Base(0)
        Pre(0)
        Post(9); Gather(4)
        sc.need(l=["T"]); total_take()
        Scat(0); Raw(0); Base(1)
        Pre(1)
        Scat(1); Raw(1); Base(2)
        Post(0); Gather(5)
        Scat(2); Raw(2); Base(3)
        prio(2)
        Pre(2)
        Scat(3); Raw(3); Base(4)
        Post(1); Gather(6)
        Scat(4); Raw(4)
        a(f"s_cmp_lt_u32 s{sPass}, 2")
        a("s_cbranch_scc1 Lc_noshift")
        for i in range(7): a(f"v_mov_b32 v{AD(i)}, v{AD(i+5)}")
        for i in range(7, 10): a(f"v_mov_b32 v{AD(i)}, 0")
        a("Lc_noshift:")
        Pre(3)
        Post(2); Gather(7)
        prio(1)
        Pre(4)
        Post(3); Gather(8)
        next_q(); Hist(0); Hist(1)
        Pre(5)
        Post(4); Gather(9)
        prio(0)
        Hist(2); Hist(3)
        Pre(6)
        Hist(4)
        Post(5)
        a(f"s_mov_b32 s{sFirst}, 0")
        sc.need(l=[("H", 4)])
        a("s_branch Lc_loop")
    def lprio(p):
        if "noprio" in EXP: return
        lbl = a.label("c_lp")
        a(f"s_cmp_eq_u32 s6, {PW}")
        a(f"s_cbranch_scc1 {lbl}")
        a(f"s_setprio {p}")
        a(f"{lbl}:")
    a.lines = []
    body()
    a.lines = real
    body()
    a("Lc_first:")
    for i in range(7, 10): slot_read(i)
    a("s_waitcnt lgkmcnt(6)")
    gather(0)
    gather(1)
    next_q()
    for w in range(NW):
        a(f"s_waitcnt vmcnt({NW-1-w+2})")
        if w == 1: g_store()
        for i in range(3): a(f"v_mov_b32 v{RAW(w)+i}, v{ST1(w)+i}")
        hist(w)
    a("s_waitcnt lgkmcnt(0)")
    a("s_barrier")
    a(f"s_cmp_lg_u32 s6, {PW}")
    a("s_cbranch_scc1 Lc_first2")
    prio(3)
    prefix(PF)
    a("s_waitcnt lgkmcnt(0)")
    a("Lc_first2:")
    gather(2)
    addr_scan([AD(i) for i in range(5)])
    gather(3)
    a(f"s_mov_b64 s[{GM(9)}:{GM(9)+1}], 0")
    for i in range(8): a(f"v_mov_b32 v{XR(0)+i}, 0")
    a("s_waitcnt lgkmcnt(0)")
    a("s_branch Lc_joined")

    sc = body.tail
    a("Lc_tail:")
    EP = AD(0)
    a(f"v_add_u32 v{TM}, 1024, v0")
    srd(a, 28, 64, 65, E * 8)
    a(f"v_lshlrev_b32 v{TM+1}, 3, v0")
    for h in range(2):
        e = EP + 6 * h
        edge_of_slot(a, 0 if h == 0 else TM, e + 4, e + 5)
        a(f"v_lshlrev_b32 v{e+4}, 3, v{e+4}")
        a(f"buffer_load_dwordx2 v[{e}:{e+1}], v{e+4}, s[28:31], 0 offen"); sc.vm("m")
    Pre(7)
    Post(6)
    def xgather(r, k):
        sc.need(v=[("R", k)])
        cvt_c(r)
        for h in range(2):
            a(f"v_and_b32 v{GAT(h)}, 0x7ffff, v{r+2*h}")
            a(f"v_cmpx_ne_u32_e64 s[{GM(h)}:{GM(h)+1}], 0, v{r+2*h}")
            a(f"buffer_load_dwordx2 v[{GAT(h)}:{GAT(h)+1}], v{GAT(h)}, s[12:15], 0 idxen"); sc.vm(("g", "x", k, h))
            a("s_mov_b64 exec, -1")
    def XPre(r, k, h): proc_pre(r + 2 * h, r + 2 * h + 1, PR(h)); sc.ds(("G", "x", k, h), 2)
    def XPost(k, h):
        sc.need(v=[("g", "x", k, h)], l=[("G", "x", k, h), ("A", h)])
        sticky(XR(h))
        a(f"s_mov_b64 exec, s[{GM(h)}:{GM(h)+1}]")
        proc_post(GAT(h), PR(h), XR(h))
        a("s_mov_b64 exec, -1")
        sc.ds(("A", h), 2)
    srd(a, 28, 70, 71, E * 8)
    xgather(RAW(0), 0)
    Pre(8); Post(7)
    Pre(9); Post(8)
    XPre(RAW(0), 0, 0)
    Post(9)
    a(f"s_cmp_eq_u32 s{sExc}, 0")
    a("s_cbranch_scc1 Lc_nox")
    XPre(RAW(0), 0, 1)
    XPost(0, 0); XPost(0, 1)
    a(f"s_cmp_le_u32 s{sExc}, 64")
    a("s_cbranch_scc1 Lc_nox")
    xgather(RAW(1), 1)
    XPre(RAW(1), 1, 0); XPre(RAW(1), 1, 1)
    XPost(1, 0); XPost(1, 1)
    a("Lc_nox:")
    a("s_waitcnt vmcnt(0) lgkmcnt(0)")
    sticky(XR(0)); sticky(XR(1))
    a(f"v_cmp_gt_i32 vcc, 0, v{vSticky}")
    a(f"s_cmp_gt_u32 s{sExc}, 128")
    a("s_cselect_b32 s5, 1, 0")
    a("s_cmp_lg_u64 vcc, 0")
    a("s_cselect_b32 s4, 2, 0")
    a("s_or_b32 s4, s4, s5")
    a("s_cbranch_scc0 Lc_noflag")
    a(f"v_mov_b32 v{TM}, s4")
    a(f"ds_or_b32 v{vEight}, v{TM} offset:{FLAG-8}")
    a("s_waitcnt lgkmcnt(0)")
    a("Lc_noflag:")
    stamp(a)
    a("s_barrier")
    stamp(a)
    AC = SRT(0)
    a(f"ds_read_b32 v{TM}, v{vEight} offset:{FLAG-8}")
    a(f"v_lshlrev_b32 v{TM+1}, 3, v0")
    a(f"v_add_u32 v{TT}, 8192, v{TM+1}")
    for h in range(2):
        va = TT if h else TM + 1
        a(f"ds_read_b64 v[{AC+4*h}:{AC+4*h+1}], v{va} offset:{AC01}")
        a(f"ds_read_b64 v[{AC+4*h+2}:{AC+4*h+3}], v{va} offset:{AC23}")
        a(f"ds_read_b64 v[{EP+6*h+2}:{EP+6*h+3}], v{va} offset:{GATE}")
    a("s_waitcnt lgkmcnt(0)")
    a(f"v_readfirstlane_b32 s7, v{TM}")
    for i in range(8):
        a(f"v_subrev_u32 v{AC+i}, {AINIT:#x}, v{AC+i}")
        a(f"v_cvt_f32_i32 v{AC+i}, v{AC+i}")
    a("s_cmp_lg_u32 s7, 0")
    a("s_cbranch_scc1 Lc_slow")
    a("Lc_fin:")
    UP, UN = SRT(6), SRT(8)
    def unpack(dst, src):
        for d in range(4):
            if d & 1: a(f"v_and_b32 v{dst+d}, 0xffff0000, v{src+d//2}")
            else: a(f"v_lshlrev_b32 v{dst+d}, 16, v{src+d//2}")
    def fin_slot(h):
        e, ac = EP + 6 * h, AC + 4 * h
        for d in range(4): a(f"v_ldexp_f32 v{ac+d}, v{ac+d}, s{sMx}")
        a(f"v_cvt_pk_bf16_f32 v{ac}, v{ac}, v{ac+1}")
        a(f"v_cvt_pk_bf16_f32 v{ac+1}, v{ac+2}, v{ac+3}")
        for i in range(2):
            for d in range(4):
                op = "s_pack_hh_b32_b16" if d & 1 else "s_pack_ll_b32_b16"
                a(f"{op} s4, s{72 + 4*i + d//2}, s{74 + 4*i + d//2}")
                a(f"v_dot2_f32_bf16 v{UP+d}, v{ac+i}, s4, {'0' if i == 0 else 'v%d' % (UP+d)}")
        unpack(UN, e + 2)
        for d in range(4): a(f"v_cvt_pk_bf16_f32 v{UP+d}, 0, v{UP+d}")
        for d in range(4): a(f"v_mul_f32 v{UP+d}, v{UP+d}, v{UN+d}")
        for d in range(4): a(f"v_cvt_pk_bf16_f32 v{UP+d}, 0, v{UP+d}")
        unpack(UN, e)
        for d in range(4): a(f"v_add_f32 v{UP+d}, v{UP+d}, v{UN+d}")
        a(f"v_cvt_pk_bf16_f32 v{e}, v{UP}, v{UP+1}")
        a(f"v_cvt_pk_bf16_f32 v{e+1}, v{UP+2}, v{UP+3}")
        a(f"buffer_store_dwordx2 v[{e}:{e+1}], v{e+4}, s[28:31], 0 offen")
    fin_slot(0)
    a("s_cmp_ge_u32 s6, 4")
    a("s_cbranch_scc1 Lc_done")
    fin_slot(1)
    a("Lc_done:")
    if "stamp" in EXP:
        stamp(a)
        rstamp(a, 63)
        a("s_lshl_b32 s4, s2, 12")
        a(f"s_add_u32 s4, s4, {STAMP_OFF}")
        a("v_lshlrev_b32 v126, 2, v0")
        a("buffer_store_dword v127, v126, s[20:23], s4 offen")
    a("Lc_end:")
    a("s_endpgm")

    a("Lc_slow:")
    sD, sP, sN = RAW(1), RAW(1) + 2, RAW(1) + 4
    vL12, vAD = RAW(3), RAW(3) + 1
    sJ, sNx, sW0, sDc, sOff = 36, 37, 38, 39, 40
    table_load(sD, sP, sN)
    Z = PR(0)
    for i in range(4): a(f"v_mov_b32 v{Z+i}, 0")
    a(f"v_lshlrev_b32 v{TM}, 4, v0")
    a(f"v_add_u32 v{TM}, {BUF}, v{TM}")
    for i in range(3): a(f"ds_write_b128 v{TM}, v[{Z}:{Z+3}] offset:{16384*i}")
    a(f"v_mul_u32_u24 v{vL12}, 12, v{vLane}")
    a("s_waitcnt vmcnt(0)")
    table_scan(sD, sP, sN, RECOFF)
    a(f"s_mov_b32 s{sJ}, 0")
    a(f"s_mov_b32 s{sNx}, 0")
    a(f"s_mov_b32 s{sDc}, {MARK:#x}")
    for i in range(8): a(f"v_mov_b32 v{AC+i}, 0")
    sWin = 41
    a(f"s_mov_b32 s{sMx}, 0")
    a(f"s_mov_b32 s{sW0}, -64")
    a(f"s_add_u32 s{sWin}, s{sTot}, 63")
    a(f"s_lshr_b32 s{sWin}, s{sWin}, 6")
    a("s_waitcnt lgkmcnt(0)")
    a("s_barrier")
    a("Lc_slow_loop:")
    a(f"s_cmp_le_i32 s{sWin}, 0")
    a("s_cbranch_scc1 Lc_slow_done")
    a(f"s_sub_u32 s{sWin}, s{sWin}, 1")
    a(f"s_add_u32 s{sW0}, s{sW0}, 64")
    a(f"s_mul_i32 s{sOff}, s{sW0}, 12")
    a(f"v_add_u32 v{vAD}, s{sDc}, v{vL12}")
    a("Lc_run:")
    a(f"s_sub_u32 s4, s{sNx}, s{sW0}")
    a("s_cmp_ge_i32 s4, 64")
    a("s_cbranch_scc1 Lc_built")
    a("s_max_i32 s4, s4, 0")
    a(f"s_cmp_lg_u32 s{sJ}, 64")
    a("s_cbranch_scc1 Lc_cont")
    a("s_mov_b64 exec, -1")
    a(f"v_mov_b32 v{sD}, v{sD+1}")
    a(f"v_mov_b32 v{sP}, v{sP+1}")
    a(f"v_mov_b32 v{sD+1}, {MARK:#x}")
    a(f"v_mov_b32 v{sP+1}, 0x7fffffff")
    a(f"s_mov_b32 s{sJ}, 0")
    a("Lc_cont:")
    a(f"v_readlane_b32 s{sDc}, v{sD}, s{sJ}")
    a(f"v_readlane_b32 s{sNx}, v{sP}, s{sJ}")
    a("s_lshl_b64 exec, -1, s4")
    a(f"s_add_u32 s{sJ}, s{sJ}, 1")
    a(f"v_add_u32 v{vAD}, s{sDc}, v{vL12}")
    a("s_branch Lc_run")
    a("Lc_built:")
    a("s_mov_b64 exec, -1")
    r = RAW(0)
    a(f"buffer_load_dwordx3 v[{r}:{r+2}], v{vAD}, s[20:23], s{sOff} offen")
    a("s_waitcnt vmcnt(0)")
    cvt_c(r)
    for h in range(2):
        a(f"v_and_b32 v{GAT(h)}, 0x7ffff, v{r+2*h}")
        a(f"buffer_load_dwordx2 v[{GAT(h)}:{GAT(h)+1}], v{GAT(h)}, s[12:15], 0 idxen")
    for h in range(2): proc_pre(r + 2 * h, r + 2 * h + 1, PR(h))
    a("s_waitcnt vmcnt(0) lgkmcnt(0)")
    for h in range(2):
        a(f"v_cmpx_ne_u32 vcc, 0, v{r+2*h}")
        proc_s(GAT(h), PR(h))
        a(f"v_add_u32 v{PR(h)+6}, {BUF}, v{PR(h)+6}")
        for d in range(4): a(f"v_mul_f32 v{TT+d}, v{mdreg(GAT(h), d)}, v{TT+d}")
        for d in range(4): a(f"v_cvt_f64_f32 v[{XR(0)+2*d}:{XR(0)+2*d+1}], v{TT+d}")
        for d in range(4): a(f"ds_add_f64 v{PR(h)+6}, v[{XR(0)+2*d}:{XR(0)+2*d+1}] offset:{d*SL*8}")
        a("s_mov_b64 exec, -1")
    a("s_branch Lc_slow_loop")
    a("Lc_slow_done:")
    a("s_waitcnt lgkmcnt(0)")
    a("s_barrier")
    a(f"v_lshlrev_b32 v{TM}, 3, v0")
    a(f"v_add_u32 v{TM}, {BUF}, v{TM}")
    for h in range(2):
        for d in range(4):
            a(f"ds_read_b64 v[{PR(0)+8*h+2*d}:{PR(0)+8*h+2*d+1}], v{TM} offset:{d*SL*8+8192*h}")
    a("s_waitcnt lgkmcnt(0)")
    for i in range(8):
        a(f"v_cvt_f32_f64 v{TM}, v[{PR(0)+2*i}:{PR(0)+2*i+1}]")
        a(f"v_add_f32 v{AC+i}, v{AC+i}, v{TM}")
    a("s_branch Lc_fin")
    return 128, 102

def desc(name, vgpr, sgpr):
    v4 = -(-vgpr // 4) * 4
    return f""".amdhsa_kernel {name}
  .amdhsa_next_free_vgpr {vgpr}
  .amdhsa_next_free_sgpr {sgpr}
  .amdhsa_accum_offset {v4}
  .amdhsa_group_segment_fixed_size 0
  .amdhsa_kernarg_size 112
  .amdhsa_user_sgpr_count 2
  .amdhsa_user_sgpr_kernarg_segment_ptr 1
  .amdhsa_system_sgpr_workgroup_id_x 1
  .amdhsa_float_denorm_mode_32 3
.end_amdhsa_kernel
"""

def build(c):
    ap, ac = Asm(), Asm()
    pv, ps = gen_P(ap, c)
    cv, cs = gen_C(ac, c)
    out = HEADER
    out += f"; @launch kernel=p_kernel grid=({c.PGRID},1,1) block=({c.PT},1,1) lds={c.PLDS}\n"
    out += f"; @launch kernel=c_kernel grid=(256,1,1) block=(1024,1,1) lds={CLDS}\n"
    out += '.amdgcn_target "amdgcn-amd-amdhsa--gfx950"\n.text\n'
    for name, body in (("p_kernel", ap), ("c_kernel", ac)):
        out += f".globl {name}\n.p2align 8\n.type {name},@function\n" + body.padded()
    out += '.section .rodata,"a"\n.p2align 6\n' + desc("p_kernel", pv, ps) + ".p2align 6\n" + desc("c_kernel", cv, cs)
    return out

if __name__ == "__main__":
    ap = argparse.ArgumentParser()
    ap.add_argument("-o", default=f"cdna_kernels/{NAME}.s")
    ap.add_argument("--ld", default="nt")
    ap.add_argument("--st", default="sc1")
    ap.add_argument("--rec", default="")
    ap.add_argument("--exp", default="")
    x = ap.parse_args()
    EXP.update(x.exp.split(","))
    c = Cfg(ld=x.ld, st=x.st, rec=x.rec)
    open(x.o, "w").write(build(c))
```

```python
import sys, argparse, struct
from asmlib import Asm

T = 10240000
E = 320000
NAME = "standalone__molecular_angular_gemnet__graph"
HEADER = open("cdna_kernels/%s.s.ref" % NAME).read().split("; Override launch")[0]
WS_BYTES = 268435456
EXP = set()
OPT = {}
MDOFF = 3 << 20
MAXOFF = 7 << 20
GOFF = 8 << 20
DOFF = 10 << 20
RECOFF = 12 << 20
KAP = 1.0 / 32767.0
BIAS = 64
MARK = 0x40000000
MAGIC = 0x4B400000
STAMP_OFF = 0xC000000

def f32(x): return "0x%08x" % struct.unpack("<I", struct.pack("<f", x))[0]

def srd(a, d, lo, hi, nrec, stride=0, off=0):
    if off:
        a(f"s_add_u32 s{d}, s{lo}, {off}")
        a(f"s_addc_u32 s{d+1}, s{hi}, 0")
        a(f"s_and_b32 s{d+1}, s{d+1}, 0xffff")
    else:
        a(f"s_mov_b32 s{d}, s{lo}")
        a(f"s_and_b32 s{d+1}, s{hi}, 0xffff")
    if stride: a(f"s_or_b32 s{d+1}, s{d+1}, {stride << 16}")
    a(f"s_mov_b32 s{d+2}, {nrec}")
    a(f"s_mov_b32 s{d+3}, 0x00020000")

def wave_scan(a, regs, op="v_add_u32", halves=False):
    if isinstance(regs, int): regs = [regs]
    for sh in (1, 2, 4, 8):
        for v in regs: a(f"{op}_dpp v{v}, v{v}, v{v} row_shr:{sh} row_mask:0xf bank_mask:0xf bound_ctrl:0")
    for v in regs: a(f"{op}_dpp v{v}, v{v}, v{v} row_bcast:15 row_mask:0xa bank_mask:0xf")
    if halves: return
    for v in regs: a(f"{op}_dpp v{v}, v{v}, v{v} row_bcast:31 row_mask:0xc bank_mask:0xf")

def stamp(a, v=127):
    if "stamp" not in EXP: return
    a("s_memtime s[100:101]")
    a("s_waitcnt lgkmcnt(0)")
    a(f"v_writelane_b32 v{v}, s100, m0")
    a("s_add_u32 m0, m0, 1")

def rstamp(a, lane, v=127, flag="stamp"):
    if flag not in EXP: return
    a("s_memrealtime s[100:101]")
    a("s_waitcnt lgkmcnt(0)")
    a(f"v_writelane_b32 v{v}, s100, {lane}")

def pack_hi_aware(a, dst, lo, hi, t):
    a(f"v_cvt_pk_bf16_f32 v{t}, v{lo}, 0")
    a(f"v_and_b32 v{t+1}, 0x7fffffff, v{hi}")
    a(f"v_add_u32 v{t+1}, 0x8000, v{t+1}")
    a(f"v_sub_u32 v{t+1}, v{t+1}, v{t}")
    a(f"v_max_i32 v{t+1}, 0, v{t+1}")
    a(f"v_and_b32 v{t+1}, 0x7fff0000, v{t+1}")
    a(f"v_or_b32 v{t}, v{t}, v{t+1}")
    a(f"v_and_b32 v{t+1}, 0x80000000, v{hi}")
    a(f"v_or_b32 v{dst}, v{t}, v{t+1}")

def rbf_pairs(a, vd, dst, t, sc):
    for p in range(4):
        x, y, r = t, t + 1, dst + p
        a(f"v_subrev_f32 v{x}, s{sc+2*p}, v{vd}")
        a(f"v_subrev_f32 v{y}, s{sc+1+2*p}, v{vd}")
        for op in ("sq", "m10", "exp"):
            a(f"v_cvt_pk_bf16_f32 v{x}, 0, v{x}")
            a(f"v_cvt_pk_bf16_f32 v{y}, 0, v{y}")
            if op == "sq":
                a(f"v_mul_f32 v{x}, v{x}, v{x}")
                a(f"v_mul_f32 v{y}, v{y}, v{y}")
            elif op == "m10":
                a(f"v_mul_f32 v{x}, 0xc1200000, v{x}")
                a(f"v_mul_f32 v{y}, 0xc1200000, v{y}")
            else:
                a(f"v_mul_f32 v{x}, 0x3fb8aa3b, v{x}")
                a(f"v_mul_f32 v{y}, 0x3fb8aa3b, v{y}")
                a(f"v_exp_f32 v{x}, v{x}")
                a(f"v_exp_f32 v{y}, v{y}")
        a(f"v_cvt_pk_bf16_f32 v{r}, v{x}, v{y}")

def edge_of_slot(a, vslot, vdst, t):
    a(f"v_lshlrev_b32 v{t}, 8, v{vslot}")
    a(f"v_and_b32 v{t}, 0xfffffc00, v{t}")
    a(f"v_and_or_b32 v{vdst}, v{vslot}, 3, v{t}")
    a(f"v_or_b32 v{vdst}, s3, v{vdst}")

class Cfg:
    def __init__(s, ld="", st="", rec=""):
        s.NQ = 4
        s.n = 20000
        s.NC = T // s.n
        s.NB = 256 * s.NQ
        s.CS = -(-(s.n + s.NB) * 6 // 128) * 128
        s.ld = (" " + ld) if ld else ""
        s.st = (" " + st) if st else ""
        s.rec = (" " + rec) if rec else ""
        s.NMAX = 256
        s.side = "" if "sideplain" in EXP else " sc1"
        s.PT = 1024

QC = (1 << 32) * 4 // E
QGAP = 131072 - E // 4

class VM:
    def __init__(s, a): s.a, s.q = a, []
    def issue(s, tag, text): s.a(text); s.q.append(tag)
    def wait(s, *tags):
        k = max(len(s.q) - 1 - s.q[::-1].index(t) for t in tags)
        s.a(f"s_waitcnt vmcnt({len(s.q) - 1 - k})")

class Sched:
    def __init__(s, a): s.a, s.v, s.l, s.vd, s.ld = a, [], [], 0, 0
    def vm(s, tag): s.v.append(tag)
    def ds(s, tag, n=1): s.l += [tag] * n
    def _cnt(s, q, done, tags, cap):
        ks = [len(q) - 1 - q[::-1].index(t) for t in tags if t in q]
        if not ks or max(ks) < done: return None, done
        n = min(len(q) - 1 - max(ks), cap)
        return n, len(q) - n
    def need(s, v=(), l=()):
        nv, s.vd = s._cnt(s.v, s.vd, v, 63)
        nl, s.ld = s._cnt(s.l, s.ld, l, 15)
        parts = ([f"vmcnt({nv})"] if nv is not None else []) + ([f"lgkmcnt({nl})"] if nl is not None else [])
        if parts: s.a("s_waitcnt " + " ".join(parts))
    def drain_l(s): s.a("s_waitcnt lgkmcnt(0)"); s.ld = len(s.l)
    def copy(s, a):
        t = Sched(a); t.v, t.l, t.vd, t.ld = list(s.v), list(s.l), s.vd, s.ld; return t

def gen_P(a, c):
    NB = c.NB
    HS = lambda s: s * NB * 4
    CUR = 2 * NB * 4
    MISC = 3 * NB * 4
    R0 = MISC + 32
    TSTG = R0 + (c.n + NB) * 6
    c.PLDS = TSTG + 8192
    c.PGRID = 256
    vO = lambda s, j: 4 + 50 * s + j
    vI = lambda s, j: 24 + 50 * s + j
    vA = lambda s, j: 44 + 50 * s + j
    S, X, TMP = 104, 120, 124
    vm = VM(a)
    a("p_kernel:")
    a("s_cmp_ge_u32 s2, 256")
    a("s_cbranch_scc1 Lp_end")
    pst = [0]
    def ps():
        if "pstamp" not in EXP: return
        a("s_memrealtime s[100:101]" if pst[0] in (0,) else "s_memtime s[100:101]")
        a("s_waitcnt lgkmcnt(0)")
        a(f"s_mov_b32 s{(32, 39)[pst[0]] if pst[0] < 2 else 64+pst[0]}, s100")
        if pst[0] == 2:
            a("s_mov_b32 s64, s32")
            a("s_mov_b32 s65, s39")
        pst[0] += 1
    ps(); ps()
    a("s_load_dwordx4 s[4:7], s[0:1], 8")
    a("s_load_dwordx2 s[8:9], s[0:1], 32")
    a("s_load_dwordx2 s[10:11], s[0:1], 104")
    a("s_load_dwordx2 s[44:45], s[0:1], 0")
    a("s_load_dwordx2 s[46:47], s[0:1], 72")
    a("s_load_dwordx4 s[64:67], s[0:1], 56")
    a("s_load_dwordx2 s[68:69], s[0:1], 24")
    a("s_load_dwordx2 s[70:71], s[0:1], 40")
    a("v_lshlrev_b32 v1, 4, v0")
    a("v_lshlrev_b32 v2, 3, v0")
    a(f"v_mov_b32 v{S}, 0")
    a(f"v_mov_b32 v{S+1}, 0")
    a(f"ds_write_b64 v2, v[{S}:{S+1}]")
    a(f"ds_write_b64 v2, v[{S}:{S+1}] offset:{MISC}")
    a("v_lshrrev_b32 v3, 6, v0")
    a("v_readfirstlane_b32 s33, v3")
    a("v_cmpx_gt_u32 vcc, 1000, v0")
    a("s_mul_i32 s34, s2, 160000")
    a("s_lshr_b32 s36, s34, 1")
    a("s_waitcnt lgkmcnt(0)")
    srd(a, 16, 6, 7, T * 4)
    srd(a, 12, 4, 5, T * 4)
    def ld(kind, s, g):
        if kind == "A":
            a(f"s_add_u32 s35, s36, {(5*s+g)*8000}")
            vm.issue(("A", s, g), f"buffer_load_dwordx2 v[{vA(s,2*g)}:{vA(s,2*g)+1}], v2, s[20:23], s35 offen{c.ld}")
        else:
            r, sr = (vO(s, 4*g), 16) if kind == "O" else (vI(s, 4*g), 12)
            a(f"s_add_u32 s35, s34, {(5*s+g)*16000}")
            vm.issue((kind, s, g), f"buffer_load_dwordx4 v[{r}:{r+3}], v1, s[{sr}:{sr+3}], s35 offen{c.ld}")
    ld("O", 0, 0); ld("I", 0, 0)
    a("s_load_dwordx8 s[56:63], s[46:47], 0")
    a("s_load_dwordx4 s[96:99], s[70:71], 0")
    for k in range(3): a(f"s_load_dword s{72+k}, s[66:67], {64*k}")
    a("s_load_dword s75, s[64:65], 0")
    srd(a, 48, 44, 45, E * 8)
    srd(a, 52, 68, 69, E * 2)
    M = S
    DI, RB, GG, T2 = vO(1, 0), vO(1, 2), vO(1, 6), vO(1, 22)
    a("s_lshl_b32 s3, s2, 3")
    a(f"v_lshlrev_b32 v{T2}, 11, v0")
    a("s_mul_i32 s41, s2, 10000")
    a("s_add_u32 s42, s41, 8000")
    vm.issue("d0", f"buffer_load_dwordx2 v[{DI}:{DI+1}], v{T2}, s[52:55], s3 offen")
    vm.issue("m0", f"buffer_load_dwordx2 v[{M}:{M+1}], v2, s[48:51], s41 offen")
    vm.issue("m1", f"buffer_load_dwordx2 v[{M+2}:{M+3}], v2, s[48:51], s42 offen")
    ld("O", 0, 1); ld("I", 0, 1)
    srd(a, 20, 8, 9, T * 2)
    srd(a, 28, 10, 11, RECOFF)
    for s in range(2):
        d = (24, 52)[s]
        a(f"s_mul_i32 s37, s2, {2*c.CS}")
        a(f"s_add_u32 s37, s37, {RECOFF + s*c.CS}")
        a(f"s_add_u32 s{d}, s10, s37")
        a(f"s_addc_u32 s{d+1}, s11, 0")
        a(f"s_and_b32 s{d+1}, s{d+1}, 0xffff")
        a(f"s_mov_b32 s{d+3}, 0x00020000")
    a(f"s_mov_b32 s43, {QGAP}")
    a("s_waitcnt lgkmcnt(0)")
    for p in range(4):
        a(f"s_lshl_b32 s{88+2*p}, s{96+p}, 16")
        a(f"s_and_b32 s{89+2*p}, s{96+p}, 0xffff0000")
    a("s_barrier")
    def md_row(h):
        r = M + 2 * h
        for k in range(2):
            for d in range(4):
                op = "s_pack_hh_b32_b16" if d & 1 else "s_pack_ll_b32_b16"
                a(f"{op} s40, s{56 + 4*k + d//2}, s{58 + 4*k + d//2}")
                a(f"v_dot2_f32_bf16 v{M+4+d}, v{r+k}, s40, {'0' if k == 0 else 'v%d' % (M+4+d)}")
        a(f"s_mul_i32 s40, s2, 1250")
        a(f"s_add_u32 s40, s40, {1000*h}")
        a(f"v_add_u32 v{M+10}, s40, v0")
        a(f"v_max3_f32 v{M+11}, |v{M+4}|, |v{M+5}|, |v{M+6}|")
        a(f"v_max_f32 v{M+11}, v{M+11}, |v{M+7}|")
        a(f"v_mov_b32 v{M+12}, {MISC+8}")
        a(f"ds_max_u32 v{M+12}, v{M+11}")
        pack_hi_aware(a, r, M + 4, M + 5, M + 8)
        pack_hi_aware(a, r + 1, M + 6, M + 7, M + 8)
        a(f"v_mul_hi_u32_u24 v{M+8}, {QC}, v{M+10}")
        a(f"v_mad_u32_u24 v{M+10}, v{M+8}, s43, v{M+10}")
        a(f"v_lshlrev_b32 v{M+10}, 3, v{M+10}")
        a(f"s_mov_b32 s40, {MDOFF + BIAS*8}")
        a(f"buffer_store_dwordx2 v[{r}:{r+1}], v{M+10}, s[28:31], s40 offen{c.side}")
    def g_slot(h, fill):
        a("s_lshl_b32 s40, s2, 24")
        a(f"v_lshl_add_u32 v{DI+h}, v0, 16, s40")
        a("s_load_dwordx8 s[72:79], s[66:67], 0")
        a("s_load_dwordx4 s[80:83], s[66:67], 32")
        a("s_load_dwordx4 s[84:87], s[64:65], 0")
        rbf_pairs(a, DI + h, RB, T2, 88)
        for i in range(4):
            if i < len(fill): fill[i]()
            a("s_waitcnt lgkmcnt(0)")
            for l in range(4):
                for d in range(4):
                    op = "s_pack_hh_b32_b16" if d & 1 else "s_pack_ll_b32_b16"
                    x, y = (72 + 2*l, 72 + 2*(3+l)) if l < 3 else (84, 86)
                    a(f"{op} s40, s{x + d//2}, s{y + d//2}")
                    g = GG + 4 * l + d
                    a(f"v_dot2_f32_bf16 v{g}, v{RB+i}, s40, {'0' if i == 0 else 'v%d' % g}")
            if i < 3:
                a(f"s_load_dwordx8 s[72:79], s[66:67], {48*(i+1)}")
                a(f"s_load_dwordx4 s[80:83], s[66:67], {48*(i+1)+32}")
                a(f"s_load_dwordx4 s[84:87], s[64:65], {16*(i+1)}")
        R = RB
        for d in range(4): a(f"v_add_f32 v{R+d}, |v{GG+d}|, |v{GG+4+d}|")
        for d in range(4): a(f"v_add_f32 v{R+d}, v{R+d}, |v{GG+8+d}|")
        for d in range(4): a(f"v_cvt_pk_bf16_f32 v{GG+12+d}, 0, v{GG+12+d}")
        a(f"v_max3_f32 v{R}, v{R}, v{R+1}, v{R+2}")
        a(f"v_max_f32 v{R}, v{R}, v{R+3}")
        a(f"v_mul_f32 v{R}, {f32(1.03)}, v{R}")
        a(f"v_frexp_exp_i32_f32 v{R+3}, v{R}")
        a(f"v_sub_u32 v{T2}, 0, v{R+3}")
        for d in range(4): a(f"v_ldexp_f32 v{GG+12+d}, v{GG+12+d}, v{R+3}")
        for l in range(3):
            for d in range(4):
                a(f"v_ldexp_f32 v{GG+4*l+d}, v{GG+4*l+d}, v{T2}")
                a(f"v_mul_f32 v{GG+4*l+d}, {f32((1, 2, 4)[l] * KAP ** (l+1))}, v{GG+4*l+d}")
        for d in range(4): a(f"v_cvt_pk_bf16_f32 v{GG+d}, v{GG+d}, v{GG+4+d}")
        a(f"v_cvt_pk_bf16_f32 v{GG+6}, v{GG+12}, v{GG+13}")
        a(f"v_cvt_pk_bf16_f32 v{GG+7}, v{GG+14}, v{GG+15}")
        pack_hi_aware(a, GG + 4, GG + 8, GG + 9, T2)
        pack_hi_aware(a, GG + 5, GG + 10, GG + 11, T2)
        a("s_lshl_b32 s40, s2, 13")
        a(f"s_add_u32 s41, s40, {GOFF}")
        a(f"v_lshlrev_b32 v{T2}, 5, v0")
        a(f"ds_write_b128 v{T2}, v[{GG}:{GG+3}] offset:{R0}")
        a(f"ds_write_b128 v{T2}, v[{GG+4}:{GG+7}] offset:{R0+16}")
        a("s_lshl_b32 s40, s33, 10")
        a(f"v_add_u32 v{T2}, s40, v1")
        a(f"ds_read_b128 v[{GG+8}:{GG+11}], v{T2} offset:{R0}")
        a(f"ds_read_b128 v[{GG+12}:{GG+15}], v{T2} offset:{R0+1024}")
        a("s_waitcnt lgkmcnt(0)")
        a(f"buffer_store_dwordx4 v[{GG+8}:{GG+11}], v{T2}, s[28:31], s41 offen{c.side}")
        a(f"buffer_store_dwordx4 v[{GG+12}:{GG+15}], v{T2}, s[28:31], s41 offen offset:1024{c.side}")
    L = lambda k, s, g: (lambda: ld(k, s, g))
    PP = lambda p: (a(f"s_setprio {p}") if "pnoprio" not in EXP else None)
    PP(3)
    a("s_cmp_ge_u32 s33, 4")
    a("s_cbranch_scc1 Lp_nog")
    g_slot(24, [])
    a("Lp_nog:")
    ld("O", 0, 2); ld("I", 0, 2)
    vm.wait("m1")
    md_row(0)
    a("s_cmp_ge_u32 s33, 5")
    a("s_cbranch_scc1 Lp_nomd")
    a("s_mul_i32 s41, s2, 2560")
    a(f"s_add_u32 s41, s41, {DOFF}")
    a(f"buffer_store_dwordx2 v[{DI}:{DI+1}], v2, s[28:31], s41 offen{c.side}")
    a("v_cmpx_gt_u32 vcc, 250, v0")
    a("s_cbranch_execz Lp_nomd2")
    md_row(1)
    a("Lp_nomd2:")
    a("s_mov_b64 exec, -1")
    a("Lp_nomd:")
    ps()

    def hist(s, g):
        vm.wait(("O", s, g), ("I", s, g))
        a("v_mov_b32 v3, 1")
        for j in range(4*g, 4*g + 4):
            o, i, t, u = vO(s, j), vI(s, j), TMP + (j & 1) * 2, TMP + 1 + (j & 1) * 2
            a(f"v_lshrrev_b32 v{t}, 8, v{o}")
            a(f"v_mul_hi_u32_u24 v{u}, {QC}, v{i}")
            a(f"v_add_u32 v{i}, {BIAS}, v{i}")
            a(f"v_bfi_b32 v{t}, 3, v{o}, v{t}")
            a(f"v_and_b32 v{u}, 3, v{u}")
            a(f"v_and_b32 v{o}, 0x3fc, v{o}")
            a(f"v_mad_u32_u24 v{i}, v{u}, s43, v{i}")
            a(f"v_lshl_or_b32 v{o}, v{u}, 10, v{o}")
            a(f"v_lshl_or_b32 v{i}, v{t}, 19, v{i}")
            a(f"ds_add_u32 v{o}, v3 offset:{HS(s)}")
    def prefix(s):
        C, R = S, S + 4
        a(f"v_and_b32 v{X}, 0x3f0, v1")
        a(f"ds_read_b128 v[{C}:{C+3}], v1 offset:{HS(s)}")
        for r in range(3):
            a(f"ds_read_b128 v[{R+4*r}:{R+4*r+3}], v{X} offset:{HS(s)+1024*r}")
        a(f"v_mov_b32 v{X+3}, 0")
        for r in range(3):
            a(f"s_cmp_gt_u32 s33, {r}")
            a(f"s_cselect_b32 s{37+r}, -1, 0")
        a("s_waitcnt lgkmcnt(0)")
        for i in range(16): a(f"v_add_u32 v{C+i}, 1, v{C+i}")
        for i in range(16): a(f"v_lshrrev_b32 v{C+i}, 1, v{C+i}")
        for r in range(3):
            a(f"v_add3_u32 v{R+4*r}, v{R+4*r}, v{R+4*r+1}, v{R+4*r+2}")
            a(f"v_add_u32 v{R+4*r}, v{R+4*r}, v{R+4*r+3}")
            a(f"v_and_b32 v{R+4*r}, s{37+r}, v{R+4*r}")
        a(f"v_add3_u32 v{X+1}, v{R}, v{R+4}, v{R+8}")
        E_ = R
        a(f"v_mov_b32 v{E_}, v{C}")
        for i in range(1, 4): a(f"v_add_u32 v{E_+i}, v{E_+i-1}, v{C+i}")
        a(f"v_lshl_or_b32 v{X+1}, v{X+1}, 16, v{E_+3}")
        wave_scan(a, X + 1)
        a(f"v_readlane_b32 s38, v{X+1}, 63")
        a(f"v_and_b32 v{X+1}, 0xffff, v{X+1}")
        a(f"v_sub_u32 v{X+1}, v{X+1}, v{E_+3}")
        a("s_lshr_b32 s38, s38, 16")
        a(f"v_add_u32 v{X+1}, s38, v{X+1}")
        for i in range(4): a(f"v_add_u32 v{E_+i}, v{E_+i}, v{X+1}")
        for i in range(4): a(f"v_mul_u32_u24 v{E_+4+i}, 12, v{E_+i}")
        for i in range(4): a(f"ds_write_b32 v{E_+4+i}, v{X+3} offset:{R0-4}")
        for i in range(4): a(f"v_sub_u32 v{E_+i}, v{E_+i}, v{C+i}")
        for i in range(4): a(f"v_mad_u32_u24 v{E_+8+i}, v{E_+i}, 12, 2")
        a(f"ds_write_b128 v1, v[{E_+8}:{E_+11}] offset:{CUR}")
        a(f"v_add_u32 v{E_+7}, 127, v{E_+7}")
        a(f"v_and_b32 v{E_+7}, -128, v{E_+7}")
        a("v_cmpx_eq_u32 vcc, 255, v0")
        a(f"ds_write_b32 v{X+3}, v{E_+7} offset:{MISC+4*s}")
        a("s_mov_b64 exec, -1")
        a("s_waitcnt lgkmcnt(0)")
        a("s_barrier")
        for i in range(4): a(f"v_lshl_or_b32 v{C+i}, v{C+i}, 16, v{E_+i}")
        a("s_and_b32 s38, s33, 1")
        a("s_lshl_b32 s38, s38, 3")
        a("s_and_b32 s39, s33, 2")
        a("s_lshl_b32 s39, s39, 1")
        a("s_add_u32 s38, s38, s39")
        a(f"s_add_u32 s38, s38, {TSTG}")
        a(f"v_lshl_add_u32 v{X}, v{X}, 3, s38")
        for i in range(4): a(f"ds_write_b32 v{X}, v{C+i} offset:{i*32+s*16}")
    def cosines(s, lo, hi):
        for p in range(lo, hi):
            t, u, r = TMP + (p & 1) * 2, TMP + 1 + (p & 1) * 2, vA(s, p)
            a(f"v_lshlrev_b32 v{t}, 16, v{r}")
            a(f"v_and_b32 v{u}, 0xffff0000, v{r}")
            for x in (t, u): a(f"v_mul_f32 v{x}, 0.15915494, v{x}")
            for x in (t, u): a(f"v_fract_f32 v{x}, v{x}")
            for x in (t, u): a(f"v_cos_f32 v{x}, v{x}")
            a(f"v_cvt_pknorm_i16_f32 v{r}, v{t}, v{u}")
    def phaseB(s, work):
        a("s_waitcnt lgkmcnt(0)")
        ps()
        a("s_barrier")
        ps()
        a("s_cmp_ge_u32 s33, 4")
        a(f"s_cbranch_scc1 Lp_skipB{s}")
        a("s_setprio 3")
        prefix(s)
        a("s_setprio 0")
        a(f"Lp_skipB{s}:")
        for f in work: f()
        a("s_cmp_lt_u32 s33, 4")
        a(f"s_cbranch_scc1 Lp_skipBB{s}")
        a("s_barrier")
        a(f"Lp_skipBB{s}:")
        ps()
    def keys(s, fill):
        a("v_mov_b32 v3, 6")
        a(f"v_mov_b32 v{X}, 0")
        a(f"ds_read_b32 v{X}, v{X} offset:{MISC+4*s}")
        def atom(g):
            for j in range(4*g, 4*g + 4):
                a(f"ds_add_rtn_u32 v{vO(s,j)}, v{vO(s,j)}, v3 offset:{CUR}")
        atom(0)
        for g in range(5):
            if g < 4: atom(g + 1)
            w = (4 if g < 4 else 0) + (4 if g > 0 else 0)
            for f in fill[g]: f()
            a(f"s_waitcnt lgkmcnt({w})")
            for j in range(4*g, 4*g + 4):
                o, t, u = vO(s, j), TMP + (j & 1) * 2, TMP + 1 + (j & 1) * 2
                a(f"v_and_b32 v{t}, -4, v{o}")
                a(f"v_and_b32 v{u}, 2, v{o}")
                a(f"ds_write_b32 v{t}, v{vI(s,j)} offset:{R0}")
                a(f"v_lshl_add_u32 v{o}, v{u}, 1, v{o}")
        a(f"v_readfirstlane_b32 s{(26, 54)[s]}, v{X}")
    def cwrites(s, fill):
        for g in range(5):
            for f in fill[g]: f()
            vm.wait(("A", s, g))
            cosines(s, 2 * g, 2 * g + 2)
            for j in range(4*g, 4*g + 4):
                hi = "_d16_hi" if j & 1 else ""
                a(f"ds_write_b16{hi} v{vO(s,j)}, v{vA(s,j//2)} offset:{R0-2}")
        a(f"v_add_u32 v{X}, 0x10000, v1")
        a("s_waitcnt lgkmcnt(0)")
        ps()
        a("s_barrier")
        ps()
        for i in range(8):
            off = R0 + i * 16000
            r, off = ("v1", off) if off < 65536 else (f"v{X}", off - 65536)
            a(f"ds_read_b128 v[{vO(s,4*i)}:{vO(s,4*i)+3}], {r} offset:{off}")
    def st(s, i):
        d = (24, 52)[s]
        a(f"s_mov_b32 s40, {i*16000}")
        vm.issue(("S", s, i), f"buffer_store_dwordx4 v[{vO(s,4*i)}:{vO(s,4*i)+3}], v1, s[{d}:{d+3}], s40 offen{c.st}")
    ST = lambda s, i: (lambda: st(s, i))

    hist(0, 0)
    PP(2)
    ld("O", 0, 3); ld("I", 0, 3); hist(0, 1)
    PP(1)
    ld("O", 0, 4); ld("I", 0, 4); hist(0, 2)
    PP(0)
    ld("A", 0, 0); ld("A", 0, 1); hist(0, 3)
    ld("A", 0, 2); ld("A", 0, 3); hist(0, 4)
    ld("A", 0, 4)
    phaseB(0, [L("O", 1, 0)])
    keys(0, [[L("I", 1, 0)], [], [L("O", 1, 1)], [L("I", 1, 1)], []])
    cwrites(0, [[L("O", 1, 2)], [], [L("I", 1, 2)], [], [L("O", 1, 3)]])
    PP(3)
    ld("I", 1, 3); hist(1, 0)
    PP(2)
    ld("O", 1, 4); hist(1, 1)
    PP(1)
    ld("I", 1, 4); hist(1, 2)
    PP(0)
    ld("A", 1, 0); ld("A", 1, 1); hist(1, 3)
    ld("A", 1, 2); ld("A", 1, 3); hist(1, 4)
    ld("A", 1, 4)
    k0 = 3 if "mid" in EXP else (0 if "late" in EXP else 5)
    phaseB(1, [])
    keys(1, [[ST(0, g - (5 - k0))] if g >= 5 - k0 else [] for g in range(5)])
    cwrites(1, [[ST(0, k0 + g // 2)] if g % 2 == 0 and "late" not in EXP else [] for g in range(5)])
    for i in range(0 if "late" in EXP else k0 + 3, 8): st(0, i)
    a(f"v_add_u32 v{X+1}, {TSTG}, v1")
    a(f"ds_read_b128 v[{S}:{S+3}], v{X+1}")
    a(f"v_mov_b32 v{X+2}, 0")
    a(f"ds_read_b32 v{X+3}, v{X+2} offset:{MISC+8}")
    for i in range(8):
        a(f"s_waitcnt lgkmcnt({9-i})")
        st(1, i)
    if "pstamp" in EXP:
        ps()
        a("s_waitcnt vmcnt(0)")
        ps()
        a("s_memrealtime s[96:97]")
        a("s_waitcnt lgkmcnt(0)")
        a("s_mov_b64 exec, -1")
        a("v_mov_b32 v4, 0")
        for k in range(1, pst[0]): a(f"v_writelane_b32 v4, s{64+k}, {k-1}")
        a("v_writelane_b32 v4, s64, 62")
        a("v_writelane_b32 v4, s96, 63")
        srd(a, 12, 10, 11, WS_BYTES)
        a("s_lshl_b32 s40, s2, 12")
        a(f"s_add_u32 s40, s40, {STAMP_OFF}")
        a("v_lshlrev_b32 v5, 2, v0")
        a("buffer_store_dword v4, v5, s[12:15], s40 offen")
    a("s_cmp_ge_u32 s33, 8")
    a("s_cbranch_scc1 Lp_end")
    a("s_lshl_b32 s39, s2, 13")
    a("s_waitcnt lgkmcnt(0)")
    a(f"buffer_store_dwordx4 v[{S}:{S+3}], v1, s[28:31], s39 offen{c.side}")
    a("v_cmpx_eq_u32 vcc, 0, v0")
    a("s_cbranch_execz Lp_end")
    a("s_lshl_b32 s39, s2, 2")
    a(f"s_add_u32 s39, s39, {MAXOFF}")
    a(f"buffer_store_dword v{X+3}, v{X+2}, s[28:31], s39 offen" + ("" if "maxsc1" not in EXP else c.side))
    a("Lp_end:")
    a("s_endpgm")
    return 128, 102

SL = 1280
HIST, BASE = 0, 5120
GA, GB = 10240, 10240 + 16 * SL
AC01, AC23 = GB + 8 * SL, GB + 16 * SL
GATE = GB + 24 * SL
BUF = GATE + 8 * SL
NW, NBATCH = 5, 4
NWIN = NW * NBATCH + 2
SCRW = NWIN * 256
CLDS = BUF + 16 * SCRW
assert CLDS <= 163840
FLAG = HIST + 4 * 1270
AINIT = 0x40000000

def gen_C(a, c):
    NB = c.NB
    L0 = "l1" not in EXP
    vLane, vSA, vEight, vSticky, vTot, vNegM = 1, 2, 3, 4, 5, 6
    AD = lambda i: 8 + i
    vMagic, vCode = 20, 21
    RAW = lambda w: 22 + 6 * w
    SRT = lambda i: 52 + 2 * i
    GAT = lambda i: 72 + 2 * (i % 5)
    XR = lambda i: 82 + 4 * (i % 2)
    PR = lambda i: 90 + 10 * (i % 2)
    TT = 110
    TM = 116
    PF = PR(1)
    vSA2 = 126
    sTot, sExc = 8, 9
    sG = 24
    sQ = 16
    sNext, sRem, sPass, sFirst, sLeft, sMx = 32, 33, 34, 35, 26, 27
    WM = lambda w: 36 + 2 * w
    GM = lambda i: 46 + 2 * (i % 5)
    SC = 56

    def proc_pre(vKey, vC, R):
        g, la, c01, c2, t = R, R + 6, R + 7, R + 8, R + 9
        a(f"v_lshrrev_b32 v{la}, 16, v{vKey}")
        a(f"v_fmaak_f32 v{c01}, v{vC}, v{vC}, {f32(-0.5/KAP/KAP)}")
        a(f"v_and_b32 v{la}, 0xfff8, v{la}")
        a(f"v_add_f32 v{c2}, {f32(-0.25/KAP/KAP)}, v{c01}")
        a(f"v_add_u32 v{t}, v{la}, v{la}")
        if "nog" in EXP:
            a("ds_nop"); a("ds_nop")
        else:
            a(f"ds_read_b64 v[{g+4}:{g+5}], v{la} offset:{GB}")
            a(f"ds_read_b128 v[{g}:{g+3}], v{t} offset:{GA}")
        a(f"v_mul_f32 v{c2}, v{c2}, v{vC}")
        a(f"v_cvt_pk_bf16_f32 v{c01}, v{vC}, v{c01}")
    def proc_s(vM, R):
        g, la, c01, c2 = R, R + 6, R + 7, R + 8
        a(f"v_lshlrev_b32 v{TT}, 16, v{g+4}")
        a(f"v_mul_f32 v{TT+1}, v{g+4}, v{c2}")
        a(f"v_lshlrev_b32 v{TT+2}, 16, v{g+5}")
        a(f"v_mul_f32 v{TT+3}, v{g+5}, v{c2}")
        a(f"v_mul_f32 v{TT}, v{TT}, v{c2}")
        a(f"v_mul_f32 v{TT+2}, v{TT+2}, v{c2}")
        for d in (1, 3, 0, 2):
            a(f"v_dot2c_f32_bf16 v{TT+d}, v{g+d}, v{c01}")
        a(f"v_lshlrev_b32 v{TT+4}, 16, v{vM}")
        a(f"v_lshlrev_b32 v{TT+5}, 16, v{vM+1}")
    mdreg = lambda vM, d: (TT + 4, vM, TT + 5, vM + 1)[d]
    def sticky(X):
        a(f"v_bitop3_b32 v{vSticky}, v{vSticky}, v{X}, v{X+1} bitop3:0xfe")
        a(f"v_bitop3_b32 v{vSticky}, v{vSticky}, v{X+2}, v{X+3} bitop3:0xfe")
    def proc_post(vM, R, X):
        la = R + 6
        proc_s(vM, R)
        for d in (1, 3, 0, 2):
            a(f"v_fma_f32 v{X+d}, v{mdreg(vM, d)}, v{TT+d}, v{vMagic}")
        a(f"v_lshl_add_u64 v[{X}:{X+1}], v[{X}:{X+1}], 0, v[{vNegM}:{vNegM+1}]")
        a(f"v_lshl_add_u64 v[{X+2}:{X+3}], v[{X+2}:{X+3}], 0, v[{vNegM}:{vNegM+1}]")
        if "noatom" in EXP:
            a("ds_nop"); a("ds_nop")
            for d in range(4): a(f"v_mov_b32 v{X+d}, 0")
        else:
            a(f"ds_add_rtn_u64 v[{X}:{X+1}], v{la}, v[{X}:{X+1}] offset:{AC01}")
            a(f"ds_add_rtn_u64 v[{X+2}:{X+3}], v{la}, v[{X+2}:{X+3}] offset:{AC23}")
    def table_load(vD, vP, t):
        a("s_lshl_b32 s4, s6, 5")
        a(f"v_and_or_b32 v{t}, v{vLane}, 31, s4")
        a(f"v_lshrrev_b32 v{t+1}, 1, v{t}")
        a(f"v_lshlrev_b32 v{t+1}, 13, v{t+1}")
        a(f"v_lshlrev_b32 v{t+2}, 4, v{t}")
        a(f"v_and_or_b32 v{t+1}, v{t+2}, 16, v{t+1}")
        a(f"v_lshrrev_b32 v{t+2}, 2, v{vLane}")
        a(f"v_and_or_b32 v{t+1}, v{t+2}, 8, v{t+1}")
        a("s_lshl_b32 s4, s3, 3")
        a(f"buffer_load_dwordx2 v[{vP}:{vP+1}], v{t+1}, s[20:23], s4 offen")
        a(f"v_mul_u32_u24 v{vD}, {c.CS}, v{t}")
    def table_scan(vD, vP, vN, add):
        for i in range(2):
            a(f"v_and_b32 v{vN+2+i}, 0xffff, v{vP+i}")
            a(f"v_lshrrev_b32 v{vN+i}, 16, v{vP+i}")
            a(f"v_mov_b32 v{vP+i}, v{vN+i}")
        wave_scan(a, [vP, vP + 1])
        a(f"v_readlane_b32 s{sTot}, v{vP}, 63")
        a(f"v_add_u32 v{vD}, {add & 0xffffffff}, v{vD}")
        for i in range(2): a(f"v_add_u32 v{vN+2+i}, v{vN+2+i}, v{vN+i}")
        a(f"v_add_u32 v{vP+1}, s{sTot}, v{vP+1}")
        for i in range(2): a(f"v_sub_u32 v{vN+2+i}, v{vN+2+i}, v{vP+i}")
        a(f"v_readlane_b32 s{sTot}, v{vP+1}, 63")
        a(f"v_mad_i32_i24 v{vD+1}, v{vN+3}, 12, v{vD}")
        a(f"v_mad_i32_i24 v{vD}, v{vN+2}, 12, v{vD}")

    a("c_kernel:")
    a("s_cmp_ge_u32 s2, 256")
    a("s_cbranch_scc1 Lc_end")
    if "stamp" in EXP:
        a("s_mov_b32 m0, 0")
        a("v_mov_b32 v127, 0")
    rstamp(a, 62)
    stamp(a)
    a("s_setprio 3")
    a("s_load_dwordx2 s[10:11], s[0:1], 104")
    a("s_load_dwordx2 s[64:65], s[0:1], 0")
    a("s_load_dwordx4 s[68:71], s[0:1], 80")
    a("s_and_b32 s3, s2, 7")
    a("s_lshl_b32 s3, s3, 5")
    a("s_lshr_b32 s4, s2, 3")
    a("s_or_b32 s3, s3, s4")
    a("s_lshl_b32 s3, s3, 2")
    Q = 108
    vD, vP, vN = Q + 2, Q + 4, Q + 6
    vDi, vMx, T2, Z = 90, 92, 98, 98
    RB = lambda h: XR(0) + 4 * h
    ST1 = lambda w: 104 + 4 * w
    CAP = NW * 64
    a(f"v_lshrrev_b32 v{Q}, 6, v0")
    a(f"v_and_b32 v{vLane}, 63, v0")
    a(f"v_readfirstlane_b32 s6, v{Q}")
    a(f"v_mov_b32 v{Z+8}, 0")
    a(f"v_mov_b32 v{Z+9}, 0")
    a(f"v_lshlrev_b32 v{Q}, 3, v0")
    a(f"ds_write_b64 v{Q}, v[{Z+8}:{Z+9}] offset:{HIST}")
    a(f"s_mul_i32 s7, s6, {SCRW}")
    a(f"s_add_u32 s7, s7, {BUF}")
    a(f"v_lshl_add_u32 v{Q}, v{vLane}, 4, s7")
    for i in range(4): a(f"v_mov_b32 v{Z+i}, 12")
    a("s_waitcnt lgkmcnt(0)")
    srd(a, 20, 10, 11, WS_BYTES)
    table_load(vD, vP, vN)
    a("s_mul_i32 s4, s3, 640")
    a(f"s_add_u32 s4, s4, {DOFF}")
    a(f"v_lshlrev_b32 v96, 1, v0")
    a(f"buffer_load_ushort v{vDi}, v96, s[20:23], s4 offen")
    a(f"buffer_load_ushort v{vDi+1}, v96, s[20:23], s4 offen offset:2048")
    a(f"v_lshlrev_b32 v96, 4, v{vLane}")
    a(f"s_mov_b32 s4, {MAXOFF}")
    a(f"buffer_load_dwordx4 v[{vMx}:{vMx+3}], v96, s[20:23], s4 offen")
    a("s_barrier")
    for i in range(NWIN // 4):
        a(f"ds_write_b128 v{Q}, v[{Z}:{Z+3}] offset:{1024*i}")
    a(f"v_lshl_add_u32 v{Q+1}, v{vLane}, 2, s7")
    for i in range(NWIN // 4 * 4, NWIN):
        a(f"ds_write_b32 v{Q+1}, v{Z} offset:{256*i}")
    srd(a, 12, 10, 11, 4 * 131072, stride=8, off=MDOFF)
    a(f"v_add_u32 v{vD}, {(RECOFF - MARK) & 0xffffffff}, v{vD}")
    a(f"v_lshrrev_b32 v{Q}, 5, v{vLane}")
    a(f"v_mul_u32_u24 v{Q}, {CAP}, v{Q}")
    a(f"s_movk_i32 s4, {CAP}")
    if 'stamp2' in EXP: stamp(a)
    a("s_waitcnt vmcnt(3)")
    if 'stamp2' in EXP: stamp(a)
    vS, vT = vN, vN + 2
    for i in range(2):
        a(f"v_and_b32 v{vT+i}, 0xffff, v{vP+i}")
        a(f"v_lshrrev_b32 v{vS+i}, 16, v{vP+i}")
        a(f"v_mov_b32 v{vP+i}, v{vS+i}")
    wave_scan(a, [vP, vP + 1], halves=True)
    for i in range(2): a(f"v_sub_u32 v{vS+i}, v{vP+i}, v{vS+i}")
    for q in range(4): a(f"v_readlane_b32 s{sQ+q}, v{vP+q//2}, {31+32*(q&1)}")
    for i in range(2): a(f"v_sub_u32 v{vT+i}, v{vT+i}, v{vS+i}")
    a(f"v_mad_i32_i24 v{vD+1}, v{vT+1}, 12, v{vD}")
    a(f"v_mad_i32_i24 v{vD}, v{vT}, 12, v{vD}")
    for i in range(2):
        if i: a(f"v_add_u32 v{Q}, {2*CAP}, v{Q}")
        a(f"v_min_u32 v{vT}, s4, v{vS+i}")
        a(f"v_min_u32 v{vT+1}, s4, v{vP+i}")
        a(f"v_mad_i32_i24 v{vT+2}, v{Q}, -12, v{vD+i}")
        a(f"v_add_u32 v{vT}, v{vT}, v{Q}")
        a(f"v_add_u32 v{vT+1}, v{vT+1}, v{Q}")
        a(f"v_lshl_add_u32 v{vT}, v{vT}, 2, s7")
        a(f"v_lshl_add_u32 v{vT+1}, v{vT+1}, 2, s7")
        a(f"ds_add_u32 v{vT}, v{vT+2}")
        a(f"ds_sub_u32 v{vT+1}, v{vT+2}")
    WA = [GAT(0) + i for i in range(10)] + [AD(i) for i in range(12)]
    for i in range(2 * NW):
        a(f"ds_read_b32 v{WA[i]}, v{Q+1} offset:{256*i}")
    a(f"s_mov_b32 s5, {MARK-12:#x}")
    def addr_scan(regs):
        wave_scan(a, regs)
        for k, v in enumerate(regs): a(f"v_readlane_b32 s{SC+k}, v{v}, 63")
        for k, v in enumerate(regs):
            a(f"v_add_u32 v{v}, s5, v{v}")
            a(f"s_add_u32 s5, s5, s{SC+k}")
    def raw_load(w, va, dst=None):
        dst = RAW(w) if dst is None else dst
        a(f"buffer_load_dwordx3 v[{dst}:{dst+2}], v{va}, s[20:23], 0 offen{c.rec}")
    a(f"s_waitcnt lgkmcnt({NW})")
    if 'stamp2' in EXP: stamp(a)
    addr_scan(WA[0:5])
    for w in range(NW): raw_load(w, WA[w])
    a("s_setprio 1")
    stamp(a)
    a(f"s_movk_i32 s{sExc}, {(NBATCH-1)*CAP}")
    a(f"s_movk_i32 s8, {NWIN*64}")
    for i in range(2):
        for hq in range(2):
            q = 2 * i + hq
            a(f"s_mov_b32 s{SC+hq}, s{sExc}")
            a(f"s_sub_u32 s{SC+2}, s{sQ+q}, s4")
            a(f"s_max_i32 s{SC+2}, s{SC+2}, 0")
            a(f"s_add_u32 s{sExc}, s{sExc}, s{SC+2}")
            a(f"s_min_u32 s{sQ+q}, s{sQ+q}, s4")
        a(f"v_mov_b32 v{Q}, s{SC}")
        a("s_mov_b32 exec_lo, 0")
        a(f"v_mov_b32 v{Q}, s{SC+1}")
        a("s_mov_b32 exec_lo, -1")
        a(f"v_max_u32 v{vT}, s4, v{vS+i}")
        a(f"v_mad_i32_i24 v{vT+2}, v{Q}, -12, v{vD+i}")
        a(f"v_add_u32 v{vT}, v{vT}, v{Q}")
        a(f"v_add_u32 v{vT+1}, v{vP+i}, v{Q}")
        a(f"v_lshl_add_u32 v{vT+3}, v{vT}, 2, s7")
        a(f"v_lshl_add_u32 v{vT+4}, v{vT+1}, 2, s7")
        a(f"v_cmpx_lt_u32 vcc, s4, v{vP+i}")
        a(f"v_cmpx_gt_u32 vcc, s8, v{vT}")
        a(f"ds_add_u32 v{vT+3}, v{vT+2}")
        a(f"v_cmpx_gt_u32 vcc, s8, v{vT+1}")
        a(f"ds_sub_u32 v{vT+4}, v{vT+2}")
        a("s_mov_b64 exec, -1")
    a(f"s_sub_u32 s{sExc}, s{sExc}, {(NBATCH-1)*CAP}")
    for i in range(2 * NW, NWIN):
        a(f"ds_read_b32 v{WA[i]}, v{Q+1} offset:{256*i}")
    for i in range(4): a(f"v_mov_b32 v{Z+4+i}, {AINIT:#x}")
    a(f"v_lshlrev_b32 v{Q}, 4, v0")
    a(f"ds_write_b128 v{Q}, v[{Z+4}:{Z+7}] offset:{AC01}")
    a(f"v_lshlrev_b32 v{Q}, 2, v0")
    a(f"ds_write_b32 v{Q}, v{Z+4} offset:{AC01+16384}")
    a(f"s_mul_i32 s4, s6, {512 if L0 else NW*128*8}")
    a(f"s_add_u32 s4, s4, {BUF}")
    a(f"v_lshl_add_u32 v{vSA}, v{vLane}, 3, s4")
    a(f"v_add_u32 v{vSA2}, 0x10000, v{vSA}")
    a(f"v_mov_b32 v{vEight}, 8")
    a(f"v_mov_b32 v{vSticky}, 0")
    a("s_waitcnt lgkmcnt(0)")
    addr_scan(WA[5:10])
    a("s_load_dwordx8 s[72:79], s[68:69], 0")
    def next_q():
        a(f"s_mov_b32 s{sLeft}, s{sQ}")
        for q in range(3): a(f"s_mov_b32 s{sQ+q}, s{sQ+q+1}")
        a(f"s_mov_b32 s{sQ+3}, 0")
    GQ = lambda h: (82, 90)[h]
    def g_load():
        a(f"v_lshlrev_b32 v{T2}, 5, v{vDi}")
        a(f"v_lshlrev_b32 v{T2+1}, 5, v{vDi+1}")
        a(f"s_mov_b32 s{sG}, {GOFF}")
        for h in range(2):
            if h:
                a("s_cmp_ge_u32 s6, 4")
                a("s_cbranch_scc1 Lc_g2skip")
            a(f"buffer_load_dwordx4 v[{GQ(h)}:{GQ(h)+3}], v{T2+h}, s[20:23], s{sG} offen")
            a(f"buffer_load_dwordx4 v[{GQ(h)+4}:{GQ(h)+7}], v{T2+h}, s[20:23], s{sG} offen offset:16")
        a("Lc_g2skip:")
    def g_store():
        a(f"v_lshlrev_b32 v{T2}, 4, v0")
        a(f"v_lshlrev_b32 v{T2+1}, 3, v0")
        for h in range(2):
            if h:
                a("s_cmp_ge_u32 s6, 4")
                a("s_cbranch_scc1 Lc_g3skip")
            a(f"ds_write_b128 v{T2}, v[{GQ(h)}:{GQ(h)+3}] offset:{GA+16384*h}")
            a(f"ds_write_b64 v{T2+1}, v[{GQ(h)+4}:{GQ(h)+5}] offset:{GB+8192*h}")
            if h: a(f"v_add_u32 v{T2+1}, 8192, v{T2+1}")
            a(f"ds_write_b64 v{T2+1}, v[{GQ(h)+6}:{GQ(h)+7}] offset:{GATE}")
        a("Lc_g3skip:")
    def magic():
        a(f"v_max3_u32 v{vMx}, v{vMx}, v{vMx+1}, v{vMx+2}")
        a(f"v_max_u32 v{vMx}, v{vMx}, v{vMx+3}")
        wave_scan(a, vMx, "v_max_u32")
        a(f"v_readlane_b32 s{sMx}, v{vMx}, 63")
        a(f"s_lshr_b32 s{sMx}, s{sMx}, 23")
        a(f"s_add_u32 s{sMx}, s{sMx}, 2")
        a(f"s_min_u32 s{sMx}, s{sMx}, 254")
        a(f"s_lshl_b32 s4, s{sMx}, 23")
        a("s_or_b32 s4, s4, 0x400000")
        a(f"v_mov_b32 v{vMagic}, s4")
        a(f"v_sub_u32 v{vNegM}, 0, v{vMagic}")
        a(f"v_not_b32 v{vNegM+1}, v{vMagic}")
        a(f"s_sub_u32 s{sMx}, s{sMx}, 150")

    def binaddr(dst, key):
        a(f"v_lshrrev_b32 v{dst}, 4, v{key}")
        a(f"v_and_b32 v{dst}, 0x1ffc, v{dst}")
    def hist(w):
        r = RAW(w)
        binaddr(r + 4, r); binaddr(r + 5, r + 2)
        a(f"v_cmpx_gt_i32_e64 s[{WM(w)}:{WM(w)+1}], s{sLeft}, v{vLane}")
        a(f"ds_add_rtn_u32 v{r+4}, v{r+4}, v{vEight} offset:{HIST}")
        a(f"ds_add_rtn_u32 v{r+5}, v{r+5}, v{vEight} offset:{HIST}")
        a("s_mov_b64 exec, -1")
        a(f"s_sub_u32 s{sLeft}, s{sLeft}, 64")
    def cvt_c(r):
        a(f"v_cvt_f32_i32_sdwa v{r+3}, sext(v{r+1}) dst_sel:DWORD dst_unused:UNUSED_PAD src0_sel:WORD_1")
        a(f"v_cvt_f32_i32_sdwa v{r+1}, sext(v{r+1}) dst_sel:DWORD dst_unused:UNUSED_PAD src0_sel:WORD_0")
    def base_read(w, t=TM):
        r = RAW(w)
        binaddr(t, r); binaddr(t + 1, r + 2)
        a(f"ds_read_b32 v{t}, v{t} offset:{BASE}")
        a(f"ds_read_b32 v{t+1}, v{t+1} offset:{BASE}")
        cvt_c(r)
    def scatter(w, t=TM):
        r = RAW(w)
        a(f"v_sub_u32 v{r+4}, v{t}, v{r+4}")
        a(f"v_sub_u32 v{r+5}, v{t+1}, v{r+5}")
        a(f"s_mov_b64 exec, s[{WM(w)}:{WM(w)+1}]")
        a(f"ds_write_b64 v{r+4}, v[{r}:{r+1}]")
        a(f"ds_write_b64 v{r+5}, v[{r+2}:{r+3}]")
        a("s_mov_b64 exec, -1")
    def prefix(Cn, zq=None):
        X = Cn + 20
        zq = X + 2 if zq is None else zq
        a(f"v_mul_u32_u24 v{X}, 80, v{vLane}")
        for i in range(0, 20, 4):
            a(f"ds_read_b128 v[{Cn+i}:{Cn+i+3}], v{X} offset:{HIST+4*i}")
        for i in range(4): a(f"v_mov_b32 v{zq+i}, 0")
        a("s_waitcnt lgkmcnt(0)")
        a(f"v_writelane_b32 v{Cn}, 0, 0")
        for i in range(1, 20):
            a(f"v_add_u32 v{Cn+i}, v{Cn+i}, v{Cn+i-1}")
        a(f"v_mov_b32 v{X+1}, v{Cn+19}")
        wave_scan(a, X + 1)
        a(f"v_sub_u32 v{X+1}, v{X+1}, v{Cn+19}")
        a(f"v_add_u32 v{X+1}, {BUF-8}, v{X+1}")
        for i in range(20):
            a(f"v_add_u32 v{Cn+i}, v{Cn+i}, v{X+1}")
        a(f"s_mov_b32 s4, {MARK:#x}")
        a(f"v_writelane_b32 v{Cn}, s4, 0")
        for i in range(0, 20, 4):
            a(f"ds_write_b128 v{X}, v[{Cn+i}:{Cn+i+3}] offset:{BASE+4*i}")
        for i in range(0, 20, 4):
            a(f"ds_write_b128 v{X}, v[{zq}:{zq+3}] offset:{HIST+4*i}")
        a("s_waitcnt lgkmcnt(5)")
    def total_read():
        a(f"ds_read_b32 v{vTot}, v{vEight} offset:{BASE+4*1279-8}")
    def total_take():
        a(f"v_readfirstlane_b32 s{sNext}, v{vTot}")
        a(f"s_sub_u32 s{sNext}, s{sNext}, {BUF-8}")
        a(f"s_lshr_b32 s{sNext}, s{sNext}, 3")
        a(f"s_mul_i32 s4, s6, {64 if L0 else NW*128}")
        a(f"s_sub_u32 s{sNext}, s{sNext}, s4")
    def slot_read(i):
        if L0: a(f"ds_read_b64 v[{SRT(i)}:{SRT(i)+1}], v{vSA if i < 8 else vSA2} offset:{8192*(i%8)}")
        else: a(f"ds_read_b64 v[{SRT(i)}:{SRT(i)+1}], v{vSA} offset:{512*i}")
    def gather(i):
        a(f"v_and_b32 v{GAT(i)}, 0x7ffff, v{SRT(i)}")
        if "nogather" in EXP: a(f"v_mov_b32 v{GAT(i)}, {BIAS}")
        a(f"v_cmpx_gt_i32_e64 s[{GM(i)}:{GM(i)+1}], s{sRem}, v{vLane}")
        a(f"buffer_load_dwordx2 v[{GAT(i)}:{GAT(i)+1}], v{GAT(i)}, s[12:15], 0 idxen")
        a("s_mov_b64 exec, -1")
        a(f"s_sub_u32 s{sRem}, s{sRem}, {1024 if L0 else 64}")
    def pre(i): proc_pre(SRT(i), SRT(i) + 1, PR(i))
    def post(i, vm, lg):
        a(f"s_waitcnt vmcnt({vm}) lgkmcnt({lg})")
        sticky(XR(i))
        a(f"s_mov_b64 exec, s[{GM(i)}:{GM(i)+1}]")
        proc_post(GAT(i), PR(i), XR(i))
        a("s_mov_b64 exec, -1")
    def prio(p):
        if "noprio" not in EXP: a(f"s_setprio {p}")
    PW = 15
    D = int(OPT.get("D", 5))
    XO = int(OPT.get("XO", 0))
    sc = Sched(a)
    for w in range(NW): sc.vm(("R", 0, w))
    steps = [("s", k) for k in range(40)]
    XP = int(OPT.get("XP", 33))
    steps[XP:XP] = [("x", 0), ("x", 1)]
    N = len(steps)
    pos = {st: n for n, st in enumerate(steps)}
    def regs(n):
        kind, k = steps[n]
        return SRT(k % 10) if kind == "s" else RAW(0) + 2 * k
    def Slot(k): slot_read(k % 10); sc.ds(("S", k))
    def Gather(n):
        if n >= N: return
        kind, k = steps[n]
        if kind == "s":
            sc.need(l=[("S", k)])
            if k % 10 == 0: a(f"s_mov_b32 s{sRem}, s{sNext}")
        elif k == 0:
            sc.need(v=[("R", 4, 0)]); cvt_c(RAW(0))
        a(f"v_and_b32 v{GAT(n)}, 0x7ffff, v{regs(n)}")
        if kind == "s": a(f"v_cmpx_gt_i32_e64 s[{GM(n)}:{GM(n)+1}], s{sRem}, v{vLane}")
        else: a(f"v_cmpx_ne_u32_e64 s[{GM(n)}:{GM(n)+1}], 0, v{regs(n)}")
        a(f"buffer_load_dwordx2 v[{GAT(n)}:{GAT(n)+1}], v{GAT(n)}, s[12:15], 0 idxen"); sc.vm(("g", n))
        a("s_mov_b64 exec, -1")
        if kind == "s" and k % 10 < 9: a(f"s_sub_u32 s{sRem}, s{sRem}, {1024 if L0 else 64}")
    def Pre(n):
        if n >= N: return
        if steps[n][0] == "s": sc.need(l=[("S", steps[n][1])])
        proc_pre(regs(n), regs(n) + 1, PR(n)); sc.ds(("G", n), 2)
    def Post(n):
        sc.need(v=[("g", n)], l=[("G", n), ("A", n - 2)])
        if n >= 2: sticky(XR(n))
        a(f"s_mov_b64 exec, s[{GM(n)}:{GM(n)+1}]")
        proc_post(GAT(n), PR(n), XR(n))
        a("s_mov_b64 exec, -1")
        sc.ds(("A", n), 2)
    def Hist(b, w):
        sc.need(v=[("R", b, w)])
        if w == 0: a(f"s_mov_b32 s{sLeft}, s{sQ+b}")
        if b == 1:
            for i in range(3): a(f"v_mov_b32 v{RAW(w)+i}, v{ST1(w)+i}")
        hist(w); sc.ds(("H", b, w), 2)
    def Base(b, w, t=TM): base_read(w, t); sc.ds(("B", b, w), 2)
    def Scat(b, w, t=TM): sc.need(l=[("B", b, w)]); scatter(w, t); sc.ds(("W", b, w), 2)
    def Raw(b, w):
        if 5 * b + w >= NWIN: return
        raw_load(w, WA[5 * b + w], ST1(w) if b == 1 else None); sc.vm(("R", b, w))
    def Total(): total_read(); sc.ds("T")
    def Take(): sc.need(l=["T"]); total_take()
    def Bar(l=()):
        sc.need(l=list(l)); stamp(a); a("s_barrier"); stamp(a)
    def Prefix(drain=True, bar=False):
        lbl = a.label("c_pf")
        a(f"s_cmp_lg_u32 s6, {PW}")
        a(f"s_cbranch_scc1 {lbl}")
        prio(3)
        prefix(PF)
        if bar: a("s_barrier")
        if drain: a("s_waitcnt lgkmcnt(0)")
        a(f"{lbl}:")
    def lprio(p):
        if "noprio" in EXP: return
        lbl = a.label("c_lp")
        a(f"s_cmp_eq_u32 s6, {PW}")
        a(f"s_cbranch_scc1 {lbl}")
        a(f"s_setprio {p}")
        a(f"{lbl}:")
    EP = AD(0)
    def Epi():
        a(f"v_add_u32 v{TM}, 1024, v0")
        srd(a, 28, 64, 65, E * 8)
        for h in range(2):
            e = EP + 6 * h
            edge_of_slot(a, 0 if h == 0 else TM, e + 4, e + 5)
            a(f"v_lshlrev_b32 v{e+4}, 3, v{e+4}")
            a(f"buffer_load_dwordx2 v[{e}:{e+1}], v{e+4}, s[28:31], 0 offen"); sc.vm("m")
        srd(a, 28, 70, 71, E * 8)

    a(f"s_waitcnt vmcnt({NW})")
    magic()
    prio(2)
    for w in range(NW): Hist(0, w)
    g_load(); sc.vm("G"); sc.vm("G")
    E1 = int(OPT.get("E1", 0))
    for w in range(E1): Raw(1, w)
    sc.drain_l()
    Bar()
    a(f"s_cmp_lg_u32 s6, {PW}")
    a("s_cbranch_scc1 Lc_pfx0")
    prio(3)
    prefix(SRT(0), 100)
    a("s_barrier")
    a("Lc_pfx0:")
    Raw(1, E1)
    a(f"s_cmp_eq_u32 s6, {PW}")
    a("s_cbranch_scc1 Lc_pfx1")
    a("s_barrier")
    a("Lc_pfx1:")
    stamp(a)
    Total()
    for w in range(NW): Base(0, w, SRT(w))
    for w in range(NW):
        Scat(0, w, SRT(w))
        if E1 + 1 + w < NW: Raw(1, E1 + 1 + w)
    Take()
    sc.drain_l()
    Bar()
    for k in range(10): Slot(k)
    Gather(0); Gather(1)
    sc.need(v=["G"]); g_store()
    for w in range(NW): Hist(1, w)
    sc.drain_l()
    Bar()
    Prefix(drain=True)
    if D > 2: Gather(2)
    addr_scan(WA[10:15])
    for i in range(8): a(f"v_mov_b32 v{XR(0)+i}, 0")
    Bar()
    hooks = {n: [] for n in range(-2, N + 1)}
    hooks2 = {n: [] for n in range(-2, N + 1)}
    def sort_ops(b, n0, nT):
        S_ = lambda w: (lambda: (Scat(b + 1, w), Raw(b + 2, w), Base(b + 1, w + 1) if w < NW - 1 else None))
        hooks[n0] += [lambda: prio(3), Total, lambda: Base(b + 1, 0)]
        hooks2[n0] += [Take, S_(0)]
        mid[n0 + 1] += [S_(1)]
        hooks2[n0 + 1] += [S_(2), lambda: prio(2)]
        mid[n0 + 2] += [S_(3)]
        hooks2[n0 + 2] += [S_(4)]
        hooks2[nT - 3] += [lambda: prio(1)]
        hooks2[nT - 1] += [lambda: prio(0)]
        if b + 2 < NBATCH:
            hooks2[nT - 2] += [lambda: Hist(b + 2, 0), lambda: Hist(b + 2, 1)]
            hooks2[nT - 1] += [lambda: Hist(b + 2, 2), lambda: Hist(b + 2, 3)]
            mid[nT] += [lambda: Hist(b + 2, 4)]
    mid = {n: [] for n in range(-2, N + 1)}
    late = set()
    for b in range(NBATCH):
        nT = pos[("s", 10 * (b + 1))] - D if b + 1 < NBATCH else None
        n0 = -1 if b == 0 else pos[("s", 10 * b - 1)] + XO
        if b + 1 < NBATCH: sort_ops(b, n0, nT)
        if nT is None: continue
        nb = b + 1
        free = [i for i in range(10) if pos[("s", 10 * b + i)] <= nT + 1]
        def Thook(nb=nb, nT=nT, free=free):
            Bar([("W", nb, w) for w in range(NW)] + [("H", nb + 1, w) for w in range(NW)])
            prio(2)
            for i in free: Slot(10 * nb + i)
            Gather(nT + D)
        late.add(nT)
        hooks2[nT].append(Thook)
        if nb + 1 < NBATCH: hooks2[nT if nT % 2 else nT + 1].append(Prefix)
        for i in range(10):
            if i not in free: mid[pos[("s", 10 * b + i)] - 1].insert(0, lambda k=10 * nb + i: Slot(k))
        nX = pos[("s", 10 * nb - 1)] + XO
        if nb + 1 < NBATCH:
            hooks2[nT + 1].append(lambda: lprio(1))
            hooks2[min(nT + 2, nX - 1)].append(lambda: lprio(0))
            mid[nX - 1].append(lambda nb=nb: addr_scan(WA[5 * (nb + 2):5 * (nb + 2) + 5]))
            hooks[nX].insert(0, lambda nb=nb: Bar([("S", 10 * nb + i) for i in range(10)]))
        else:
            for j, p in enumerate((2, 1, 0)): hooks2[nT + 1 + (N - nT) * (j + 1) // 4].append(lambda p=p: prio(p))
            hooks2[nT].append(lambda: prio(3))
    hooks2[N - 6].append(Epi)
    for n in range(-1, N):
        for f in hooks[n]: f()
        Pre(n + 1)
        for f in mid[n]: f()
        if n >= 0: Post(n)
        if n == -1:
            for k in range(3, D): Gather(k)
        elif n not in late: Gather(n + D)
        for f in hooks2[n]: f()
    a(f"s_cmp_le_u32 s{sExc}, 64")
    a("s_cbranch_scc1 Lc_nox")
    r = RAW(1)
    a("s_waitcnt vmcnt(0) lgkmcnt(0)")
    cvt_c(r)
    for h in range(2):
        a(f"v_and_b32 v{GAT(h)}, 0x7ffff, v{r+2*h}")
        a(f"v_cmpx_ne_u32_e64 s[{GM(h)}:{GM(h)+1}], 0, v{r+2*h}")
        a(f"buffer_load_dwordx2 v[{GAT(h)}:{GAT(h)+1}], v{GAT(h)}, s[12:15], 0 idxen")
        a("s_mov_b64 exec, -1")
    for h in range(2): proc_pre(r + 2 * h, r + 2 * h + 1, PR(h))
    a("s_waitcnt vmcnt(0) lgkmcnt(0)")
    for h in range(2):
        sticky(XR(h))
        a(f"s_mov_b64 exec, s[{GM(h)}:{GM(h)+1}]")
        proc_post(GAT(h), PR(h), XR(h))
        a("s_mov_b64 exec, -1")
    a("Lc_nox:")
    a("s_waitcnt vmcnt(0) lgkmcnt(0)")
    sticky(XR(0)); sticky(XR(1))
    a(f"v_cmp_gt_i32 vcc, 0, v{vSticky}")
    a(f"s_cmp_gt_u32 s{sExc}, 128")
    a("s_cselect_b32 s5, 1, 0")
    a("s_cmp_lg_u64 vcc, 0")
    a("s_cselect_b32 s4, 2, 0")
    a("s_or_b32 s4, s4, s5")
    a("s_cbranch_scc0 Lc_noflag")
    a(f"v_mov_b32 v{TM}, s4")
    a(f"ds_or_b32 v{vEight}, v{TM} offset:{FLAG-8}")
    a("s_waitcnt lgkmcnt(0)")
    a("Lc_noflag:")
    stamp(a)
    a("s_barrier")
    stamp(a)
    AC = SRT(0)
    a(f"ds_read_b32 v{TM}, v{vEight} offset:{FLAG-8}")
    a(f"v_lshlrev_b32 v{TM+1}, 3, v0")
    a(f"v_add_u32 v{TT}, 8192, v{TM+1}")
    for h in range(2):
        va = TT if h else TM + 1
        a(f"ds_read_b64 v[{AC+4*h}:{AC+4*h+1}], v{va} offset:{AC01}")
        a(f"ds_read_b64 v[{AC+4*h+2}:{AC+4*h+3}], v{va} offset:{AC23}")
        a(f"ds_read_b64 v[{EP+6*h+2}:{EP+6*h+3}], v{va} offset:{GATE}")
    a("s_waitcnt lgkmcnt(0)")
    a(f"v_readfirstlane_b32 s7, v{TM}")
    for i in range(8):
        a(f"v_subrev_u32 v{AC+i}, {AINIT:#x}, v{AC+i}")
        a(f"v_cvt_f32_i32 v{AC+i}, v{AC+i}")
    a("s_cmp_lg_u32 s7, 0")
    a("s_cbranch_scc1 Lc_slow")
    a("Lc_fin:")
    UP, UN = SRT(6), SRT(8)
    def unpack(dst, src):
        for d in range(4):
            if d & 1: a(f"v_and_b32 v{dst+d}, 0xffff0000, v{src+d//2}")
            else: a(f"v_lshlrev_b32 v{dst+d}, 16, v{src+d//2}")
    def fin_slot(h):
        e, ac = EP + 6 * h, AC + 4 * h
        for d in range(4): a(f"v_ldexp_f32 v{ac+d}, v{ac+d}, s{sMx}")
        a(f"v_cvt_pk_bf16_f32 v{ac}, v{ac}, v{ac+1}")
        a(f"v_cvt_pk_bf16_f32 v{ac+1}, v{ac+2}, v{ac+3}")
        for i in range(2):
            for d in range(4):
                op = "s_pack_hh_b32_b16" if d & 1 else "s_pack_ll_b32_b16"
                a(f"{op} s4, s{72 + 4*i + d//2}, s{74 + 4*i + d//2}")
                a(f"v_dot2_f32_bf16 v{UP+d}, v{ac+i}, s4, {'0' if i == 0 else 'v%d' % (UP+d)}")
        unpack(UN, e + 2)
        for d in range(4): a(f"v_cvt_pk_bf16_f32 v{UP+d}, 0, v{UP+d}")
        for d in range(4): a(f"v_mul_f32 v{UP+d}, v{UP+d}, v{UN+d}")
        for d in range(4): a(f"v_cvt_pk_bf16_f32 v{UP+d}, 0, v{UP+d}")
        unpack(UN, e)
        for d in range(4): a(f"v_add_f32 v{UP+d}, v{UP+d}, v{UN+d}")
        a(f"v_cvt_pk_bf16_f32 v{e}, v{UP}, v{UP+1}")
        a(f"v_cvt_pk_bf16_f32 v{e+1}, v{UP+2}, v{UP+3}")
        a(f"buffer_store_dwordx2 v[{e}:{e+1}], v{e+4}, s[28:31], 0 offen")
    fin_slot(0)
    a("s_cmp_ge_u32 s6, 4")
    a("s_cbranch_scc1 Lc_done")
    fin_slot(1)
    a("Lc_done:")
    if "stamp" in EXP:
        stamp(a)
        rstamp(a, 63)
        a("s_lshl_b32 s4, s2, 12")
        a(f"s_add_u32 s4, s4, {STAMP_OFF}")
        a("v_lshlrev_b32 v126, 2, v0")
        a("buffer_store_dword v127, v126, s[20:23], s4 offen")
    a("Lc_end:")
    a("s_endpgm")

    a("Lc_slow:")
    sD, sP, sN = RAW(1), RAW(1) + 2, RAW(1) + 4
    vL12, vAD = RAW(3), RAW(3) + 1
    sJ, sNx, sW0, sDc, sOff = 36, 37, 38, 39, 40
    table_load(sD, sP, sN)
    Z = PR(0)
    for i in range(4): a(f"v_mov_b32 v{Z+i}, 0")
    a(f"v_lshlrev_b32 v{TM}, 4, v0")
    a(f"v_add_u32 v{TM}, {BUF}, v{TM}")
    for i in range(3): a(f"ds_write_b128 v{TM}, v[{Z}:{Z+3}] offset:{16384*i}")
    a(f"v_mul_u32_u24 v{vL12}, 12, v{vLane}")
    a("s_waitcnt vmcnt(0)")
    table_scan(sD, sP, sN, RECOFF)
    a(f"s_mov_b32 s{sJ}, 0")
    a(f"s_mov_b32 s{sNx}, 0")
    a(f"s_mov_b32 s{sDc}, {MARK:#x}")
    for i in range(8): a(f"v_mov_b32 v{AC+i}, 0")
    sWin = 41
    a(f"s_mov_b32 s{sMx}, 0")
    a(f"s_mov_b32 s{sW0}, -64")
    a(f"s_add_u32 s{sWin}, s{sTot}, 63")
    a(f"s_lshr_b32 s{sWin}, s{sWin}, 6")
    a("s_waitcnt lgkmcnt(0)")
    a("s_barrier")
    a("Lc_slow_loop:")
    a(f"s_cmp_le_i32 s{sWin}, 0")
    a("s_cbranch_scc1 Lc_slow_done")
    a(f"s_sub_u32 s{sWin}, s{sWin}, 1")
    a(f"s_add_u32 s{sW0}, s{sW0}, 64")
    a(f"s_mul_i32 s{sOff}, s{sW0}, 12")
    a(f"v_add_u32 v{vAD}, s{sDc}, v{vL12}")
    a("Lc_run:")
    a(f"s_sub_u32 s4, s{sNx}, s{sW0}")
    a("s_cmp_ge_i32 s4, 64")
    a("s_cbranch_scc1 Lc_built")
    a("s_max_i32 s4, s4, 0")
    a(f"s_cmp_lg_u32 s{sJ}, 64")
    a("s_cbranch_scc1 Lc_cont")
    a("s_mov_b64 exec, -1")
    a(f"v_mov_b32 v{sD}, v{sD+1}")
    a(f"v_mov_b32 v{sP}, v{sP+1}")
    a(f"v_mov_b32 v{sD+1}, {MARK:#x}")
    a(f"v_mov_b32 v{sP+1}, 0x7fffffff")
    a(f"s_mov_b32 s{sJ}, 0")
    a("Lc_cont:")
    a(f"v_readlane_b32 s{sDc}, v{sD}, s{sJ}")
    a(f"v_readlane_b32 s{sNx}, v{sP}, s{sJ}")
    a("s_lshl_b64 exec, -1, s4")
    a(f"s_add_u32 s{sJ}, s{sJ}, 1")
    a(f"v_add_u32 v{vAD}, s{sDc}, v{vL12}")
    a("s_branch Lc_run")
    a("Lc_built:")
    a("s_mov_b64 exec, -1")
    r = RAW(0)
    a(f"buffer_load_dwordx3 v[{r}:{r+2}], v{vAD}, s[20:23], s{sOff} offen")
    a("s_waitcnt vmcnt(0)")
    cvt_c(r)
    for h in range(2):
        a(f"v_and_b32 v{GAT(h)}, 0x7ffff, v{r+2*h}")
        a(f"buffer_load_dwordx2 v[{GAT(h)}:{GAT(h)+1}], v{GAT(h)}, s[12:15], 0 idxen")
    for h in range(2): proc_pre(r + 2 * h, r + 2 * h + 1, PR(h))
    a("s_waitcnt vmcnt(0) lgkmcnt(0)")
    for h in range(2):
        a(f"v_cmpx_ne_u32 vcc, 0, v{r+2*h}")
        proc_s(GAT(h), PR(h))
        a(f"v_add_u32 v{PR(h)+6}, {BUF}, v{PR(h)+6}")
        for d in range(4): a(f"v_mul_f32 v{TT+d}, v{mdreg(GAT(h), d)}, v{TT+d}")
        for d in range(4): a(f"v_cvt_f64_f32 v[{XR(0)+2*d}:{XR(0)+2*d+1}], v{TT+d}")
        for d in range(4): a(f"ds_add_f64 v{PR(h)+6}, v[{XR(0)+2*d}:{XR(0)+2*d+1}] offset:{d*SL*8}")
        a("s_mov_b64 exec, -1")
    a("s_branch Lc_slow_loop")
    a("Lc_slow_done:")
    a("s_waitcnt lgkmcnt(0)")
    a("s_barrier")
    a(f"v_lshlrev_b32 v{TM}, 3, v0")
    a(f"v_add_u32 v{TM}, {BUF}, v{TM}")
    for h in range(2):
        for d in range(4):
            a(f"ds_read_b64 v[{PR(0)+8*h+2*d}:{PR(0)+8*h+2*d+1}], v{TM} offset:{d*SL*8+8192*h}")
    a("s_waitcnt lgkmcnt(0)")
    for i in range(8):
        a(f"v_cvt_f32_f64 v{TM}, v[{PR(0)+2*i}:{PR(0)+2*i+1}]")
        a(f"v_add_f32 v{AC+i}, v{AC+i}, v{TM}")
    a("s_branch Lc_fin")
    return 128, 102

def desc(name, vgpr, sgpr):
    v4 = -(-vgpr // 4) * 4
    return f""".amdhsa_kernel {name}
  .amdhsa_next_free_vgpr {vgpr}
  .amdhsa_next_free_sgpr {sgpr}
  .amdhsa_accum_offset {v4}
  .amdhsa_group_segment_fixed_size 0
  .amdhsa_kernarg_size 112
  .amdhsa_user_sgpr_count 2
  .amdhsa_user_sgpr_kernarg_segment_ptr 1
  .amdhsa_system_sgpr_workgroup_id_x 1
  .amdhsa_float_denorm_mode_32 3
.end_amdhsa_kernel
"""

def build(c):
    ap, ac = Asm(), Asm()
    pv, ps = gen_P(ap, c)
    cv, cs = gen_C(ac, c)
    out = HEADER
    out += f"; @launch kernel=p_kernel grid=({c.PGRID},1,1) block=({c.PT},1,1) lds={c.PLDS}\n"
    out += f"; @launch kernel=c_kernel grid=(256,1,1) block=(1024,1,1) lds={CLDS}\n"
    out += '.amdgcn_target "amdgcn-amd-amdhsa--gfx950"\n.text\n'
    for name, body in (("p_kernel", ap), ("c_kernel", ac)):
        out += f".globl {name}\n.p2align 8\n.type {name},@function\n" + body.padded()
    out += '.section .rodata,"a"\n.p2align 6\n' + desc("p_kernel", pv, ps) + ".p2align 6\n" + desc("c_kernel", cv, cs)
    return out

if __name__ == "__main__":
    ap = argparse.ArgumentParser()
    ap.add_argument("-o", default=f"cdna_kernels/{NAME}.s")
    ap.add_argument("--ld", default="nt")
    ap.add_argument("--st", default="sc1")
    ap.add_argument("--rec", default="")
    ap.add_argument("--exp", default="")
    ap.add_argument("--opt", default="")
    x = ap.parse_args()
    EXP.update(x.exp.split(","))
    OPT.update(kv.split("=") for kv in x.opt.split(",") if kv)
    c = Cfg(ld=x.ld, st=x.st, rec=x.rec)
    open(x.o, "w").write(build(c))
```
